```python
import torch

def _softmax(x, axis=-1):
    return torch.softmax(x, dim=axis)

def _gelu(x):
    return torch.nn.functional.gelu(x, approximate='tanh')

def _silu(x):
    return torch.nn.functional.silu(x)

def _sigmoid(x):
    return torch.sigmoid(x)

def _layernorm(x, axis=-1, eps=1e-05):
    m = x.mean(dim=axis, keepdim=True)
    v = x.var(dim=axis, keepdim=True, unbiased=False)
    return (x - m) / torch.sqrt(v + eps)

def _scatter_add(tgt, idx, src, axis=0):
    return tgt.clone().index_add_(axis, idx, src)

def _segment_sum(src, seg, n):
    out = torch.zeros((n,) + src.shape[1:], dtype=src.dtype)
    return out.index_add_(0, seg, src)

def _pad(x, pw):
    flat = tuple((v for pair in reversed(pw) for v in pair))
    return torch.nn.functional.pad(x, flat)
kernel_name = 'adaLN_cond__softmax_full_mha__dense_activation_silu__prompt'

def setup_inputs():

    _w = lambda a: (lambda t: t.to(torch.bfloat16) if t.is_floating_point() else t)(torch.as_tensor(a))

    def _A_setup():
        B, S, D = (1, 2048, 448)
        return {'x': _w((lambda *s: torch.randn(*s, dtype=torch.bfloat16) * 0.05)(B, S, D)), 'wqkv': _w((lambda *s: torch.randn(*s, dtype=torch.bfloat16) * 0.05)(D, 3 * D)), 'wo': _w((lambda *s: torch.randn(*s, dtype=torch.bfloat16) * 0.05)(D, D))}
    _A_in = _A_setup()

    def _B_setup():
        B, S, D, F = (1, 2048, 448, 1792)
        return {'x': _w((lambda *s: torch.randn(*s, dtype=torch.bfloat16) * 0.05)(B, S, D)), 'w1': _w((lambda *s: torch.randn(*s, dtype=torch.bfloat16) * 3.2)(D, F) * D ** (-0.5)), 'w2': _w((lambda *s: torch.randn(*s, dtype=torch.bfloat16) * 0.2)(F, D) * F ** (-0.5))}
    _B_in = _B_setup()
    return {'A_x': _A_in['x'], 'A_wqkv': _A_in['wqkv'], 'A_wo': _A_in['wo'], 'B_x': _B_in['x'], 'B_w1': _B_in['w1'], 'B_w2': _B_in['w2'], 'c': _w((lambda *s: torch.randn(*s, dtype=torch.bfloat16) * 0.1)(1, 448) * 8.0), 'w_mod': _w((lambda *s: torch.randn(*s, dtype=torch.bfloat16) * 0.1)(448, 6 * 448) * 448 ** (-0.5) * 8.0)}

def reference(A_x, A_wqkv, A_wo, B_x, B_w1, B_w2, c, w_mod):

    def _A_ref(x, wqkv, wo):
        B, S, D = x.shape
        H = 16
        Dh = D // H
        qkv = (lambda x, *d: x.permute(*d))((x @ wqkv).reshape(B, S, 3, H, Dh), 2, 0, 3, 1, 4)
        q, k, v = (qkv[0], qkv[1], qkv[2])
        scale = Dh ** (-0.5)
        scores = torch.einsum('bhqd,bhkd->bhqk', q, k) * scale
        p = _softmax(scores, axis=-1)
        o = torch.einsum('bhqk,bhkd->bhqd', p, v)
        return (lambda x, *d: x.permute(*d))(o, 0, 2, 1, 3).reshape(B, S, D) @ wo

    def _B_ref(x, w1, w2):
        h = torch.einsum('bsd,df->bsf', x, w1)
        h = _silu(h)
        out = torch.einsum('bsf,fd->bsd', h, w2)
        return out
    x = A_x
    mod = (_silu(c) @ w_mod).reshape(c.shape[0], 6, 1, -1)
    sa, ca, ga, sb, cb, gb = (mod[:, 0].clone(), mod[:, 1].clone(), mod[:, 2].clone(), mod[:, 3].clone(), mod[:, 4].clone(), mod[:, 5].clone())
    h = _layernorm(x, axis=-1) * (1 + ca) + sa
    x = x + ga * _A_ref(h, A_wqkv, A_wo)
    h = _layernorm(x, axis=-1) * (1 + cb) + sb
    x = x + gb * _B_ref(h, B_w1, B_w2)
    return x
```

```python
import sys

NAME = "adaLN_cond__softmax_full_mha__dense_activation_silu__prompt"

def al(x, a=65536): return (x + a - 1) // a * a
MOD_OFF = 0;                 MOD_SZ = 2688 * 4
WQKV_OFF = al(MOD_OFF + MOD_SZ); WQKV_SZ = 48 * 28 * 1024
WO_OFF = al(WQKV_OFF + WQKV_SZ); WO_SZ = 14 * 32 * 1024
W1_OFF = al(WO_OFF + WO_SZ);  W1_SZ = 56 * 28 * 1024
W2_OFF = al(W1_OFF + W1_SZ);  W2_SZ = 14 * 112 * 1024
Q_OFF = al(W2_OFF + W2_SZ);   QKV_SZ = 16 * 64 * 2 * 1024
K_OFF = Q_OFF + QKV_SZ
V_OFF = K_OFF + QKV_SZ
O_OFF = V_OFF + QKV_SZ;       O_SZ = 64 * 32 * 1024
X2_OFF = al(O_OFF + O_SZ);    X_SZ = 2048 * 448 * 2
H1_OFF = al(X2_OFF + X_SZ);   H1_SZ = 64 * 112 * 1024
WS_END = H1_OFF + H1_SZ

class Asm:
    def __init__(self):
        self.lines = []
        self.uid = 0
    def __call__(self, s):
        for l in s.strip().split("\n"):
            self.lines.append("    " + l.strip())
    def label(self, l):
        self.lines.append(l + ":")
    def new(self, p="L"):
        self.uid += 1
        return "%s_%d" % (p, self.uid)
    def raw(self, s):
        self.lines.append(s)

A = Asm()

def vr(b, n=1):
    return "v%d" % b if n == 1 else "v[%d:%d]" % (b, b + n - 1)
def sr(b, n=1):
    return "s%d" % b if n == 1 else "s[%d:%d]" % (b, b + n - 1)

P_X, P_WQKV, P_WO, P_BX, P_W1, P_W2, P_C, P_WMOD = 16, 18, 20, 22, 24, 26, 28, 30
P_OUT, P_DBG, P_WS = 32, 34, 36

def kernel_begin(name, nwg):
    A.raw(".globl %s" % name)
    A.raw(".p2align 8")
    A.raw(".type %s,@function" % name)
    A.label(name)
    A("s_cmp_ge_u32 s2, %d" % nwg)
    A("s_cbranch_scc1 %s_end" % name)
    A("s_load_dwordx16 s[16:31], s[0:1], 0")
    A("s_load_dwordx4 s[32:35], s[0:1], 64")
    A("s_load_dwordx2 s[36:37], s[0:1], 80")

def kernel_end(name):
    A.label(name + "_end")
    A("s_endpgm")

KDS = []
def kernel_desc(name, vgpr, sgpr=96):
    vg = (vgpr + 7) // 8 * 8
    KDS.append(""".amdhsa_kernel %s
  .amdhsa_next_free_vgpr %d
  .amdhsa_next_free_sgpr %d
  .amdhsa_accum_offset %d
  .amdhsa_group_segment_fixed_size 0
  .amdhsa_kernarg_size 88
  .amdhsa_user_sgpr_count 2
  .amdhsa_user_sgpr_kernarg_segment_ptr 1
  .amdhsa_system_sgpr_workgroup_id_x 1
.end_amdhsa_kernel""" % (name, vg, sgpr, vg))

def srd(d, p, off, size):
    if off:
        A("s_add_u32 s%d, s%d, 0x%x" % (d, p, off))
        A("s_addc_u32 s%d, s%d, 0" % (d + 1, p + 1))
    else:
        A("s_mov_b32 s%d, s%d" % (d, p))
        A("s_mov_b32 s%d, s%d" % (d + 1, p + 1))
    A("s_mov_b32 s%d, 0x%x" % (d + 2, size))
    A("s_mov_b32 s%d, 0x20000" % (d + 3))

def nops(n):
    while n > 0:
        k = min(n, 16)
        A("s_nop %d" % (k - 1))
        n -= k

def gen_prep():
    name = "prep_kernel"
    NW_MOD, NW_QKV, NW_WO, NW_W1, NW_W2 = 21, 48, 14, 56, 56
    b1 = NW_MOD; b2 = b1 + NW_QKV; b3 = b2 + NW_WO; b4 = b3 + NW_W1; b5 = b4 + NW_W2
    kernel_begin(name, b5)
    A("v_and_b32 v1, 7, v0")
    A("v_bfe_u32 v2, v0, 3, 1")
    A("v_lshrrev_b32 v3, 4, v0")
    A("s_waitcnt lgkmcnt(0)")
    A("s_cmp_lt_u32 s2, %d" % b1)
    A("s_cbranch_scc1 prep_mod")
    A("s_mov_b32 s60, 0x05040100")
    A("s_mov_b32 s61, 0x07060302")
    A("s_cmp_lt_u32 s2, %d" % b2)
    A("s_cbranch_scc1 prep_qkv")
    A("s_cmp_lt_u32 s2, %d" % b3)
    A("s_cbranch_scc1 prep_wo")
    A("s_cmp_lt_u32 s2, %d" % b4)
    A("s_cbranch_scc1 prep_w1")
    A("s_branch prep_w2")

    def common(RS, nunits):
        A("s_mov_b32 s50, %d" % RS)
        A("s_mov_b32 s51, %d" % (2 * RS))
        A("s_mov_b32 s52, %d" % (3 * RS))
        if nunits < 512:
            A("v_cmp_gt_u32 vcc, %d, v0" % nunits)
            A("s_and_saveexec_b64 s[54:55], vcc")
            A("s_cbranch_execz %s_end" % name)
        for grp, vo in ((0, 4), (1, 5)):
            for i in range(4):
                so = "0" if i == 0 else "s%d" % (49 + i)
                A("buffer_load_dwordx2 %s, v%d, s[40:43], %s offen" % (vr(8 + 2 * (grp * 4 + i), 2), vo, so))
        A("v_lshlrev_b32 v6, 6, v0")
        A("s_waitcnt vmcnt(0)")
        for i in range(4):
            sel = "s61" if (i & 1) else "s60"
            for p in range(4):
                A("v_perm_b32 v%d, v%d, v%d, %s" % (24 + 4 * i + p, 8 + 2 * (2 * p + 1) + (i >> 1), 8 + 2 * (2 * p) + (i >> 1), sel))
        for i in range(4):
            A("buffer_store_dwordx4 %s, v6, s[44:47], s48 offen offset:%d" % (vr(24 + 4 * i, 4), 16 * i))
        A("s_endpgm")

    A.label("prep_qkv")
    RS = 2688
    A("s_sub_u32 s56, s2, %d" % b1)
    A("s_mul_i32 s57, s56, 171")
    A("s_lshr_b32 s57, s57, 9")
    A("s_mul_i32 s58, s57, 3")
    A("s_sub_u32 s58, s56, s58")
    A("s_mul_i32 s58, s58, 896")
    A("s_mul_i32 s57, s57, 56")
    A("s_add_u32 s58, s58, s57")
    srd(40, P_WQKV, 0, 448 * 1344 * 2)
    srd(44, P_WS, WQKV_OFF, WQKV_SZ)
    A("s_mul_i32 s48, s56, %d" % (28 * 1024))
    A("v_lshlrev_b32 v4, 4, v3")
    A("v_lshl_add_u32 v4, v2, 3, v4")
    A("s_mov_b32 s59, %d" % RS)
    A("v_mul_lo_u32 v4, v4, s59")
    A("v_lshl_add_u32 v4, v1, 3, v4")
    A("v_add_u32 v4, s58, v4")
    A("v_add_u32 v5, %d, v4" % (4 * RS))
    A("v_mov_b32 v7, 0x7f000000")
    A("v_cmp_eq_u32 vcc, 7, v1")
    A("s_nop 1")
    A("v_cndmask_b32 v4, v4, v7, vcc")
    A("v_cndmask_b32 v5, v5, v7, vcc")
    common(RS, 448)

    A.label("prep_wo")
    RS = 896
    A("s_sub_u32 s56, s2, %d" % b2)
    srd(40, P_WO, 0, 448 * 448 * 2)
    srd(44, P_WS, WO_OFF, WO_SZ)
    A("s_mul_i32 s48, s56, %d" % (32 * 1024))
    A("s_lshl_b32 s58, s56, 6")
    A("v_lshrrev_b32 v4, 1, v3")
    A("v_mul_u32_u24 v4, 28, v4")
    A("v_and_b32 v7, 1, v3")
    A("v_lshl_add_u32 v4, v7, 4, v4")
    A("v_lshl_add_u32 v4, v2, 2, v4")
    A("v_mul_u32_u24 v4, %d, v4" % RS)
    A("v_lshl_add_u32 v4, v1, 3, v4")
    A("v_add_u32 v4, s58, v4")
    A("v_add_u32 v5, %d, v4" % (8 * RS))
    A("v_and_b32 v7, v7, v2")
    A("v_mov_b32 v40, 0x7f000000")
    A("v_cmp_eq_u32 vcc, 1, v7")
    A("s_nop 1")
    A("v_cndmask_b32 v5, v5, v40, vcc")
    common(RS, 512)

    A.label("prep_w1")
    RS = 3584
    A("s_sub_u32 s56, s2, %d" % b3)
    srd(40, P_W1, 0, 448 * 1792 * 2)
    srd(44, P_WS, W1_OFF, W1_SZ)
    A("s_mul_i32 s48, s56, %d" % (28 * 1024))
    A("s_lshl_b32 s58, s56, 6")
    A("v_lshlrev_b32 v4, 4, v3")
    A("v_lshl_add_u32 v4, v2, 3, v4")
    A("v_mul_u32_u24 v4, %d, v4" % RS)
    A("v_lshl_add_u32 v4, v1, 3, v4")
    A("v_add_u32 v4, s58, v4")
    A("v_add_u32 v5, %d, v4" % (4 * RS))
    common(RS, 448)

    A.label("prep_w2")
    RS = 896
    A("s_sub_u32 s56, s2, %d" % b4)
    A("s_lshr_b32 s57, s56, 2")
    A("s_and_b32 s56, s56, 3")
    srd(40, P_W2, 0, 1792 * 448 * 2)
    srd(44, P_WS, W2_OFF, W2_SZ)
    A("s_mul_i32 s48, s57, %d" % (112 * 1024))
    A("s_mul_i32 s58, s56, %d" % (28 * 1024))
    A("s_add_u32 s48, s48, s58")
    A("s_mul_i32 s59, s56, %d" % (28 * 16 * RS))
    A("s_lshl_b32 s58, s57, 6")
    A("s_add_u32 s58, s58, s59")
    A("v_lshlrev_b32 v4, 4, v3")
    A("v_lshl_add_u32 v4, v2, 2, v4")
    A("v_mul_u32_u24 v4, %d, v4" % RS)
    A("v_lshl_add_u32 v4, v1, 3, v4")
    A("v_add_u32 v4, s58, v4")
    A("v_add_u32 v5, %d, v4" % (8 * RS))
    common(RS, 448)

    A.label("prep_mod")
    srd(40, P_WMOD, 0, 448 * 2688 * 2)
    srd(44, P_C, 0, 896)
    srd(48, P_WS, MOD_OFF, MOD_SZ)
    A("v_lshrrev_b32 v1, 6, v0")
    A("v_and_b32 v2, 63, v0")
    A("v_readfirstlane_b32 s56, v1")
    A("s_nop 3")
    A("s_mul_i32 s57, s56, 112")
    A("v_lshlrev_b32 v3, 1, v2")
    A("buffer_load_ushort v4, v3, s[44:47], s57 offen")
    A("s_lshl_b32 s58, s2, 8")
    A("v_lshlrev_b32 v5, 2, v2")
    A("v_add_u32 v5, s58, v5")
    A("s_mul_i32 s59, s56, %d" % (56 * 5376))
    for i in range(56):
        A("buffer_load_dword v%d, v5, s[40:43], s59 offen" % (16 + i))
        A("s_add_u32 s59, s59, 5376")
    A("s_waitcnt vmcnt(56)")
    A("v_lshlrev_b32 v4, 16, v4")
    A("v_mul_f32 v6, 0xbfb8aa3b, v4")
    A("v_exp_f32 v6, v6")
    A("s_nop 0")
    A("v_add_f32 v6, 1.0, v6")
    A("v_rcp_f32 v6, v6")
    A("s_nop 0")
    A("v_mul_f32 v6, v4, v6")
    A("v_mov_b32 v8, 0")
    A("v_mov_b32 v9, 0")
    for i in range(56):
        A("v_readlane_b32 s60, v6, %d" % i)
        A("s_waitcnt vmcnt(%d)" % (55 - i))
        A("v_lshlrev_b32 v10, 16, v%d" % (16 + i))
        A("v_and_b32 v11, 0xffff0000, v%d" % (16 + i))
        A("v_fmac_f32 v8, s60, v10")
        A("v_fmac_f32 v9, s60, v11")
    A("v_lshlrev_b32 v12, 3, v0")
    A("ds_write_b64 v12, v[8:9]")
    A("s_waitcnt lgkmcnt(0)")
    A("s_barrier")
    A("s_cmp_lg_u32 s56, 0")
    A("s_cbranch_scc1 %s_end" % name)
    for w in range(8):
        A("ds_read_b64 %s, v12 offset:%d" % (vr(16 + 2 * w, 2), 512 * w))
    A("s_waitcnt lgkmcnt(0)")
    for w in range(1, 8):
        A("v_add_f32 v16, v16, v%d" % (16 + 2 * w))
        A("v_add_f32 v17, v17, v%d" % (17 + 2 * w))
    A("s_lshl_b32 s58, s2, 7")
    A("v_lshlrev_b32 v3, 1, v2")
    A("v_add_u32 v3, s58, v3")
    A("v_subrev_u32 v10, 448, v3")
    A("v_cmp_gt_u32 vcc, 448, v10")
    A("s_nop 1")
    A("s_mov_b64 s[62:63], vcc")
    A("v_subrev_u32 v11, 1792, v3")
    A("v_cmp_gt_u32 vcc, 448, v11")
    A("s_nop 1")
    A("s_or_b64 vcc, vcc, s[62:63]")
    A("v_add_f32 v18, 1.0, v16")
    A("v_add_f32 v19, 1.0, v17")
    A("s_nop 1")
    A("v_cndmask_b32 v16, v16, v18, vcc")
    A("v_cndmask_b32 v17, v17, v19, vcc")
    A("v_lshlrev_b32 v3, 2, v3")
    A("buffer_store_dwordx2 v[16:17], v3, s[48:51], 0 offen")
    kernel_end(name)
    kernel_desc(name, 80)
    return (name, b5, 512, 4096)

def gen_lngemm(kind):
    name = "qkv_kernel" if kind == "qkv" else "mlp1_kernel"
    NCT = 6 if kind == "qkv" else 7
    MODL = 57344
    kernel_begin(name, 256)
    L = lambda s: "%s_%s" % (name, s)
    A("v_lshrrev_b32 v1, 6, v0")
    A("v_and_b32 v2, 63, v0")
    A("v_readfirstlane_b32 s40, v1")
    A("s_lshr_b32 s41, s2, 3")
    A("s_and_b32 s42, s2, 7")
    A("v_and_b32 v3, 7, v2")
    A("v_lshrrev_b32 v4, 3, v2")
    A("s_waitcnt lgkmcnt(0)")
    if kind == "qkv":
        srd(44, P_X, 0, X_SZ)
        srd(48, P_WS, MOD_OFF, 3584)
        srd(52, P_WS, WQKV_OFF, WQKV_SZ)
    else:
        srd(44, P_WS, X2_OFF, X_SZ)
        srd(48, P_WS, MOD_OFF + 1344 * 4, 3584)
        srd(52, P_WS, W1_OFF, W1_SZ)
    A("s_lshl_b32 s60, s41, 6")
    A("s_lshl_b32 s61, s40, 3")
    A("s_add_u32 s60, s60, s61")
    A("v_add_u32 v5, s60, v3")
    A("v_mul_u32_u24 v5, 896, v5")
    A("v_lshl_add_u32 v5, v4, 4, v5")
    XR = 8
    for i in range(7):
        A("buffer_load_dwordx4 %s, v5, s[44:47], 0 offen offset:%d" % (vr(XR + 4 * i, 4), 128 * i))
    A("v_lshlrev_b32 v6, 4, v0")
    A("buffer_load_dwordx4 v[36:39], v6, s[48:51], 0 offen")
    WR = 128
    A("v_lshlrev_b32 v7, 4, v2")
    A("s_cmp_ge_u32 s40, %d" % NCT)
    A("s_cbranch_scc1 %s" % L("now"))
    A("s_mul_i32 s62, s42, %d" % NCT)
    A("s_add_u32 s62, s62, s40")
    A("s_mul_i32 s63, s62, %d" % (28 * 1024))
    for s in range(28):
        A("buffer_load_dwordx4 %s, v7, s[52:55], s63 offen offset:%d" % (vr(WR + 4 * s, 4), 1024 * (s & 3)))
        if (s & 3) == 3:
            A("s_add_u32 s63, s63, 4096")
    A("s_waitcnt vmcnt(28)")
    A("s_branch %s" % L("ln"))
    A.label(L("now"))
    A("s_waitcnt vmcnt(0)")
    A.label(L("ln"))
    A("v_add_u32 v6, %d, v6" % MODL)
    A("ds_write_b128 v6, v[36:39]")
    XF = 40
    for r in range(28):
        A("v_lshlrev_b32 v%d, 16, v%d" % (XF + 2 * r, XR + r))
        A("v_and_b32 v%d, 0xffff0000, v%d" % (XF + 2 * r + 1, XR + r))
    A("v_add_f32 v96, v%d, v%d" % (XF, XF + 1))
    A("v_add_f32 v97, v%d, v%d" % (XF + 2, XF + 3))
    A("v_add_f32 v98, v%d, v%d" % (XF + 4, XF + 5))
    A("v_add_f32 v99, v%d, v%d" % (XF + 6, XF + 7))
    for e in range(8, 56):
        A("v_add_f32 v%d, v%d, v%d" % (96 + (e & 3), 96 + (e & 3), XF + e))
    A("v_add_f32 v96, v96, v97")
    A("v_add_f32 v98, v98, v99")
    A("v_add_f32 v96, v96, v98")
    def xreduce(r, t1, t2):
        A("s_nop 1")
        A("v_add_f32_dpp v%d, v%d, v%d row_ror:8 row_mask:0xf bank_mask:0xf" % (t1, r, r))
        A("v_mov_b32 v%d, v%d" % (t2, t1))
        A("s_nop 1")
        A("v_permlane16_swap_b32 v%d, v%d" % (t1, t2))
        A("s_nop 1")
        A("v_add_f32 v%d, v%d, v%d" % (t1, t1, t2))
        A("v_mov_b32 v%d, v%d" % (t2, t1))
        A("s_nop 1")
        A("v_permlane32_swap_b32 v%d, v%d" % (t1, t2))
        A("s_nop 1")
        A("v_add_f32 v%d, v%d, v%d" % (r, t1, t2))
    xreduce(96, 100, 101)
    A("v_mul_f32 v96, 0x%08x, v96" % f2u(1.0 / 448))
    for e in range(56):
        A("v_sub_f32 v%d, v%d, v96" % (XF + e, XF + e))
    A("v_mul_f32 v97, v%d, v%d" % (XF, XF))
    A("v_mul_f32 v98, v%d, v%d" % (XF + 1, XF + 1))
    A("v_mul_f32 v99, v%d, v%d" % (XF + 2, XF + 2))
    A("v_mul_f32 v100, v%d, v%d" % (XF + 3, XF + 3))
    for e in range(4, 56):
        A("v_fmac_f32 v%d, v%d, v%d" % (97 + (e & 3), XF + e, XF + e))
    A("v_add_f32 v97, v97, v98")
    A("v_add_f32 v99, v99, v100")
    A("v_add_f32 v97, v97, v99")
    xreduce(97, 100, 101)
    A("v_mov_b32 v98, 0x%08x" % f2u(1e-5))
    A("v_fmac_f32 v98, 0x%08x, v97" % f2u(1.0 / 448))
    A("v_rsq_f32 v98, v98")
    A("s_waitcnt lgkmcnt(0)")
    A("s_barrier")
    A("v_lshlrev_b32 v5, 5, v4")
    A("v_add_u32 v5, %d, v5" % MODL)
    A("s_lshr_b32 s60, s40, 2")
    A("s_mul_i32 s60, s60, 28672")
    A("s_and_b32 s61, s40, 3")
    A("s_lshl_b32 s61, s61, 7")
    A("s_add_u32 s60, s60, s61")
    A("v_lshrrev_b32 v6, 1, v4")
    A("v_lshlrev_b32 v6, 10, v6")
    A("v_and_b32 v36, 1, v4")
    A("v_lshl_add_u32 v6, v36, 9, v6")
    A("v_lshl_add_u32 v6, v3, 4, v6")
    A("v_add_u32 v6, s60, v6")
    for i in range(7):
        b = 8 + 16 * (i & 1)
        A("ds_read_b128 %s, v5 offset:%d" % (vr(b, 4), 256 * i))
        A("ds_read_b128 %s, v5 offset:%d" % (vr(b + 4, 4), 256 * i + 16))
        A("ds_read_b128 %s, v5 offset:%d" % (vr(b + 8, 4), 1792 + 256 * i))
        A("ds_read_b128 %s, v5 offset:%d" % (vr(b + 12, 4), 1792 + 256 * i + 16))
        for j in range(8):
            A("v_mul_f32 v%d, v%d, v98" % (XF + 8 * i + j, XF + 8 * i + j))
        A("s_waitcnt lgkmcnt(0)")
        for j in range(8):
            A("v_fma_f32 v%d, v%d, v%d, v%d" % (XF + 8 * i + j, XF + 8 * i + j, b + 8 + j, b + j))
        for p in range(4):
            A("v_cvt_pk_bf16_f32 v%d, v%d, v%d" % (100 + p, XF + 8 * i + 2 * p, XF + 8 * i + 2 * p + 1))
        A("ds_write_b128 v6, v[100:103] offset:%d" % (4096 * i))
        A("s_nop 1")
    A("s_waitcnt lgkmcnt(0)")
    A("s_barrier")
    A("s_cmp_ge_u32 s40, %d" % NCT)
    A("s_cbranch_scc1 %s_end" % name)
    A("s_waitcnt vmcnt(0)")
    ACC = 8
    HB = 40
    def gemm(transposed):
        NPF = 3
        def rd(s):
            b = HB + 8 * (s % 4)
            A("ds_read_b128 %s, v7 offset:%d" % (vr(b, 4), s * 1024))
            A("ds_read_b128 %s, v7 offset:%d" % (vr(b + 4, 4), 28672 + s * 1024))
        for s in range(NPF):
            rd(s)
        for s in range(28):
            if s + NPF < 28:
                rd(s + NPF)
                A("s_waitcnt lgkmcnt(%d)" % (2 * NPF))
            else:
                A("s_waitcnt lgkmcnt(%d)" % (2 * (27 - s)))
            b = HB + 8 * (s % 4)
            for T in range(2):
                c = "0" if s == 0 else vr(ACC + 16 * T, 16)
                w = vr(WR + 4 * s, 4); h = vr(b + 4 * T, 4)
                if transposed:
                    A("v_mfma_f32_32x32x16_bf16 %s, %s, %s, %s" % (vr(ACC + 16 * T, 16), w, h, c))
                else:
                    A("v_mfma_f32_32x32x16_bf16 %s, %s, %s, %s" % (vr(ACC + 16 * T, 16), h, w, c))
        nops(16)
    def pack_store(T, srdreg, soff):
        for p in range(8):
            A("v_cvt_pk_bf16_f32 v%d, v%d, v%d" % (72 + p, ACC + 16 * T + 2 * p, ACC + 16 * T + 2 * p + 1))
        A("buffer_store_dwordx4 v[72:75], v7, s[%d:%d], %s offen" % (srdreg, srdreg + 3, soff))
        A("buffer_store_dwordx4 v[76:79], v7, s[%d:%d], %s offen offset:1024" % (srdreg, srdreg + 3, soff))
        A("s_nop 1")
    if kind == "qkv":
        srd(56, P_WS, Q_OFF, 3 * QKV_SZ)
        A("s_lshl_b32 s64, s42, 1")
        A("s_cmp_ge_u32 s40, 3")
        A("s_cselect_b32 s65, 1, 0")
        A("s_add_u32 s64, s64, s65")
        A("s_mul_i32 s65, s65, 3")
        A("s_sub_u32 s65, s40, s65")
        A("s_mul_i32 s66, s65, 0x%x" % QKV_SZ)
        A("s_lshl_b32 s67, s64, 17")
        A("s_add_u32 s66, s66, s67")
        A("s_lshl_b32 s67, s41, 12")
        A("s_add_u32 s66, s66, s67")
        A("s_add_u32 s67, s66, 2048")
        A("s_cmp_eq_u32 s65, 2")
        A("s_cbranch_scc1 %s" % L("v"))
        gemm(True)
        A("s_cmp_eq_u32 s65, 1")
        A("s_cbranch_scc1 %s" % L("kst"))
        import math
        A("s_mov_b32 s68, 0x%08x" % f2u(math.log2(math.e) / math.sqrt(28.0)))
        for r in range(32):
            A("v_mul_f32 v%d, s68, v%d" % (ACC + r, ACC + r))
        A.label(L("kst"))
        pack_store(0, 56, "s66")
        pack_store(1, 56, "s67")
        A("s_endpgm")
        A.label(L("v"))
        gemm(False)
        A("v_and_b32 v80, 31, v2")
        A("v_cmp_eq_u32 vcc, 28, v80")
        A("v_mov_b32 v81, 1.0")
        A("s_nop 1")
        for r in range(32):
            A("v_cndmask_b32 v%d, v%d, v81, vcc" % (ACC + r, ACC + r))
        pack_store(0, 56, "s66")
        pack_store(1, 56, "s67")
    else:
        srd(56, P_WS, H1_OFF, H1_SZ)
        gemm(True)
        for r in range(32):
            A("v_mul_f32 v%d, 0xbfb8aa3b, v%d" % (80 + r, ACC + r))
        for r in range(32):
            A("v_exp_f32 v%d, v%d" % (80 + r, 80 + r))
        for r in range(32):
            A("v_add_f32 v%d, 1.0, v%d" % (80 + r, 80 + r))
        for r in range(32):
            A("v_rcp_f32 v%d, v%d" % (80 + r, 80 + r))
        for r in range(32):
            A("v_mul_f32 v%d, v%d, v%d" % (ACC + r, ACC + r, 80 + r))
        A("s_lshl_b32 s66, s41, 1")
        A("s_mul_i32 s66, s66, %d" % (112 * 1024))
        A("s_lshl_b32 s67, s62, 11")
        A("s_add_u32 s66, s66, s67")
        A("s_add_u32 s67, s66, %d" % (112 * 1024))
        pack_store(0, 56, "s66")
        pack_store(1, 56, "s67")
    kernel_end(name)
    kernel_desc(name, 240)
    return (name, 256, 512, 57344 + 8192)

import struct
def f2u(f):
    return struct.unpack("<I", struct.pack("<f", f))[0]

def gen_attn():
    name = "attn_kernel"
    kernel_begin(name, 256)
    L = lambda s: "%s_%s" % (name, s)
    A("v_lshrrev_b32 v1, 6, v0")
    A("v_and_b32 v2, 63, v0")
    A("v_readfirstlane_b32 s40, v1")
    A("s_and_b32 s41, s2, 15")
    A("s_lshr_b32 s42, s2, 4")
    A("v_lshlrev_b32 v3, 4, v2")
    A("s_waitcnt lgkmcnt(0)")
    srd(44, P_WS, Q_OFF, QKV_SZ)
    srd(48, P_WS, K_OFF, QKV_SZ)
    srd(52, P_WS, V_OFF, QKV_SZ)
    srd(56, P_WS, O_OFF, O_SZ)
    A("s_lshl_b32 s60, s42, 2")
    A("s_add_u32 s60, s60, s40")
    A("s_lshl_b32 s61, s41, 6")
    A("s_add_u32 s61, s61, s60")
    A("s_lshl_b32 s61, s61, 11")
    QF = 8
    A("buffer_load_dwordx4 %s, v3, s[44:47], s61 offen" % vr(QF, 4))
    A("buffer_load_dwordx4 %s, v3, s[44:47], s61 offen offset:1024" % vr(QF + 4, 4))
    A("s_lshl_b32 s62, s41, 17")
    A("s_lshl_b32 s63, s40, 11")
    A("s_add_u32 s62, s62, s63")
    def dma():
        A("s_add_u32 s65, s64, s63")
        A("s_mov_b32 m0, s65")
        A("s_nop 0")
        A("buffer_load_dwordx4 v3, s[48:51], s62 offen lds")
        A("buffer_load_dwordx4 v3, s[48:51], s62 offen offset:1024 lds")
        A("s_add_u32 s65, s65, 8192")
        A("s_mov_b32 m0, s65")
        A("s_nop 0")
        A("buffer_load_dwordx4 v3, s[52:55], s62 offen lds")
        A("buffer_load_dwordx4 v3, s[52:55], s62 offen offset:1024 lds")
        A("s_add_u32 s62, s62, 8192")
        A("s_add_u32 s64, s64, 16384")
        A("s_and_b32 s64, s64, 0xffff")
    A("s_mov_b32 s64, 0")
    dma(); dma(); dma()
    O = 16; S = 32; KF = 48; VF = 56; P = 64
    for r in range(16):
        A("v_mov_b32 v%d, 0" % (O + r))
    A("v_mov_b32 v72, 0xff800000")
    A("s_mov_b32 s66, 0")
    A("s_mov_b32 s67, 0")
    A.label(L("loop"))
    A("s_cmp_ge_u32 s66, 13")
    A("s_cbranch_scc1 %s" % L("w0"))
    A("s_waitcnt vmcnt(8)")
    A("s_barrier")
    dma()
    A("s_branch %s" % L("go"))
    A.label(L("w0"))
    A("s_waitcnt vmcnt(0)")
    A("s_barrier")
    A.label(L("go"))
    A("v_add_u32 v4, s67, v3")
    for t in range(4):
        A("ds_read_b128 %s, v4 offset:%d" % (vr(KF, 4), 2048 * t))
        A("ds_read_b128 %s, v4 offset:%d" % (vr(KF + 4, 4), 2048 * t + 1024))
        A("ds_read_b128 %s, v4 offset:%d" % (vr(VF, 4), 8192 + 2048 * t))
        A("ds_read_b128 %s, v4 offset:%d" % (vr(VF + 4, 4), 8192 + 2048 * t + 1024))
        A("s_waitcnt lgkmcnt(2)")
        A("v_mfma_f32_32x32x16_bf16 %s, %s, %s, 0" % (vr(S, 16), vr(KF, 4), vr(QF, 4)))
        A("v_mfma_f32_32x32x16_bf16 %s, %s, %s, %s" % (vr(S, 16), vr(KF + 4, 4), vr(QF + 4, 4), vr(S, 16)))
        nops(16)
        A("v_max3_f32 v73, v%d, v%d, v%d" % (S, S + 1, S + 2))
        for r in range(3, 15, 2):
            A("v_max3_f32 v73, v73, v%d, v%d" % (S + r, S + r + 1))
        A("v_max_f32 v73, v73, v%d" % (S + 15))
        A("v_mov_b32 v74, v73")
        A("s_nop 1")
        A("v_permlane32_swap_b32 v73, v74")
        A("s_nop 1")
        A("v_max3_f32 v73, v73, v74, v72")
        A("v_sub_f32 v74, v72, v73")
        A("v_exp_f32 v74, v74")
        A("v_mov_b32 v72, v73")
        for r in range(16):
            A("v_sub_f32 v%d, v%d, v73" % (S + r, S + r))
        for r in range(16):
            A("v_exp_f32 v%d, v%d" % (S + r, S + r))
        for r in range(16):
            A("v_mul_f32 v%d, v%d, v74" % (O + r, O + r))
        for p in range(8):
            A("v_cvt_pk_bf16_f32 v%d, v%d, v%d" % (P + p, S + 2 * p, S + 2 * p + 1))
        A("s_waitcnt lgkmcnt(0)")
        A("s_nop 1")
        A("v_mfma_f32_32x32x16_bf16 %s, %s, %s, %s" % (vr(O, 16), vr(VF, 4), vr(P, 4), vr(O, 16)))
        A("v_mfma_f32_32x32x16_bf16 %s, %s, %s, %s" % (vr(O, 16), vr(VF + 4, 4), vr(P + 4, 4), vr(O, 16)))
        nops(16)
    A("s_add_u32 s67, s67, 16384")
    A("s_and_b32 s67, s67, 0xffff")
    A("s_add_u32 s66, s66, 1")
    A("s_cmp_lt_u32 s66, 16")
    A("s_cbranch_scc1 %s" % L("loop"))
    A("v_mov_b32 v73, v%d" % (O + 12))
    A("v_mov_b32 v74, v%d" % (O + 12))
    A("s_nop 1")
    A("v_permlane32_swap_b32 v73, v74")
    A("s_nop 1")
    A("v_rcp_f32 v74, v74")
    A("s_nop 0")
    for r in range(16):
        A("v_mul_f32 v%d, v%d, v74" % (O + r, O + r))
    for p in range(8):
        A("v_cvt_pk_bf16_f32 v%d, v%d, v%d" % (P + p, O + 2 * p, O + 2 * p + 1))
    A("s_lshl_b32 s60, s60, 5")
    A("s_lshl_b32 s61, s41, 1")
    A("s_add_u32 s60, s60, s61")
    A("s_lshl_b32 s60, s60, 10")
    A("buffer_store_dwordx4 %s, v3, s[56:59], s60 offen" % vr(P, 4))
    A("buffer_store_dwordx4 %s, v3, s[56:59], s60 offen offset:1024" % vr(P + 4, 4))
    kernel_end(name)
    kernel_desc(name, 80)
    return (name, 256, 256, 65536)

def gen_skgemm(kind):
    name = "wo_kernel" if kind == "wo" else "mlp2_kernel"
    KS = 32 if kind == "wo" else 112
    KW = KS // 8
    kernel_begin(name, 224)
    A("v_lshrrev_b32 v1, 6, v0")
    A("v_and_b32 v2, 63, v0")
    A("v_readfirstlane_b32 s40, v1")
    A("s_mul_i32 s41, s2, 9363")
    A("s_lshr_b32 s41, s41, 16")
    A("s_mul_i32 s42, s41, 7")
    A("s_sub_u32 s42, s2, s42")
    A("v_lshlrev_b32 v3, 4, v2")
    A("s_waitcnt lgkmcnt(0)")
    if kind == "wo":
        srd(44, P_WS, O_OFF, O_SZ)
        srd(48, P_WS, WO_OFF, WO_SZ)
        srd(52, P_X, 0, X_SZ)
        srd(56, P_WS, MOD_OFF + 896 * 4, 1792)
        srd(60, P_WS, X2_OFF, X_SZ)
    else:
        srd(44, P_WS, H1_OFF, H1_SZ)
        srd(48, P_WS, W2_OFF, W2_SZ)
        srd(52, P_WS, X2_OFF, X_SZ)
        srd(56, P_WS, MOD_OFF + 2240 * 4, 1792)
        srd(60, P_OUT, 0, X_SZ)
    A("s_mul_i32 s64, s40, %d" % (KW * 1024))
    A("s_mul_i32 s65, s41, %d" % (2 * KS * 1024))
    A("s_add_u32 s65, s65, s64")
    A("s_add_u32 s66, s65, %d" % (KS * 1024))
    A("s_mul_i32 s67, s42, %d" % (2 * KS * 1024))
    A("s_add_u32 s67, s67, s64")
    A("s_add_u32 s68, s67, %d" % (KS * 1024))
    NB = min(KW, 8)
    FB = 80
    ACC = 8
    def ld(s):
        b = FB + 16 * (s % NB)
        A("buffer_load_dwordx4 %s, v3, s[44:47], s65 offen offset:%d" % (vr(b, 4), 1024 * (s & 3)))
        A("buffer_load_dwordx4 %s, v3, s[44:47], s66 offen offset:%d" % (vr(b + 4, 4), 1024 * (s & 3)))
        A("buffer_load_dwordx4 %s, v3, s[48:51], s67 offen offset:%d" % (vr(b + 8, 4), 1024 * (s & 3)))
        A("buffer_load_dwordx4 %s, v3, s[48:51], s68 offen offset:%d" % (vr(b + 12, 4), 1024 * (s & 3)))
        if (s & 3) == 3:
            for r in (65, 66, 67, 68):
                A("s_add_u32 s%d, s%d, 4096" % (r, r))
    for s in range(NB):
        ld(s)
    issued = NB
    for s in range(KW):
        A("s_waitcnt vmcnt(%d)" % (4 * (issued - s - 1)))
        b = FB + 16 * (s % NB)
        for T in range(2):
            for C in range(2):
                acc = vr(ACC + 16 * (2 * T + C), 16)
                c = "0" if s == 0 else acc
                A("v_mfma_f32_32x32x16_bf16 %s, %s, %s, %s" % (acc, vr(b + 8 + 4 * C, 4), vr(b + 4 * T, 4), c))
        if issued < KW:
            ld(issued)
            issued += 1
    nops(16)
    A("v_and_b32 v4, 31, v2")
    A("v_mul_u32_u24 v4, 272, v4")
    A("v_lshrrev_b32 v5, 5, v2")
    A("v_lshl_add_u32 v4, v5, 4, v4")
    A("s_mul_i32 s69, s40, %d" % (64 * 272))
    A("v_add_u32 v4, s69, v4")
    for T in range(2):
        for C in range(2):
            for q in range(4):
                A("ds_write_b128 v4, %s offset:%d" % (vr(ACC + 16 * (2 * T + C) + 4 * q, 4), T * 32 * 272 + C * 128 + q * 32))
    A("v_lshrrev_b32 v5, 3, v0")
    A("v_and_b32 v6, 7, v0")
    A("s_lshl_b32 s69, s41, 6")
    A("v_add_u32 v7, s69, v5")
    A("v_mul_u32_u24 v7, 896, v7")
    A("v_lshl_add_u32 v7, v6, 4, v7")
    A("s_lshl_b32 s70, s42, 7")
    A("buffer_load_dwordx4 v[72:75], v7, s[52:55], s70 offen")
    A("v_lshlrev_b32 v76, 5, v6")
    A("s_lshl_b32 s71, s42, 8")
    A("buffer_load_dwordx4 v[80:83], v76, s[56:59], s71 offen")
    A("buffer_load_dwordx4 v[84:87], v76, s[56:59], s71 offen offset:16")
    A("v_mul_u32_u24 v4, 272, v5")
    A("v_lshl_add_u32 v4, v6, 5, v4")
    A("s_waitcnt lgkmcnt(0)")
    A("s_barrier")
    for w in range(8):
        if w * 64 * 272 + 16 < 65536 - 16:
            A("ds_read_b128 %s, v4 offset:%d" % (vr(88 + 8 * w, 4), w * 64 * 272))
            A("ds_read_b128 %s, v4 offset:%d" % (vr(92 + 8 * w, 4), w * 64 * 272 + 16))
        else:
            if w == 4:
                A("v_add_u32 v4, %d, v4" % (4 * 64 * 272))
            A("ds_read_b128 %s, v4 offset:%d" % (vr(88 + 8 * w, 4), (w - 4) * 64 * 272))
            A("ds_read_b128 %s, v4 offset:%d" % (vr(92 + 8 * w, 4), (w - 4) * 64 * 272 + 16))
    A("s_waitcnt lgkmcnt(0)")
    for w in range(1, 8):
        for j in range(8):
            A("v_add_f32 v%d, v%d, v%d" % (88 + j, 88 + j, 88 + 8 * w + j))
    A("s_waitcnt vmcnt(0)")
    for p in range(4):
        A("v_lshlrev_b32 v%d, 16, v%d" % (100 + 2 * p, 72 + p))
        A("v_and_b32 v%d, 0xffff0000, v%d" % (101 + 2 * p, 72 + p))
    for j in range(8):
        A("v_fmac_f32 v%d, v%d, v%d" % (100 + j, 88 + j, 80 + j))
    for p in range(4):
        A("v_cvt_pk_bf16_f32 v%d, v%d, v%d" % (108 + p, 100 + 2 * p, 101 + 2 * p))
    A("buffer_store_dwordx4 v[108:111], v7, s[60:63], s70 offen")
    kernel_end(name)
    kernel_desc(name, max(FB + 16 * NB, 160))
    return (name, 224, 512, 8 * 64 * 272)

def main():
    launches = []
    launches.append(gen_prep())
    launches.append(gen_lngemm("qkv"))
    launches.append(gen_attn())
    launches.append(gen_skgemm("wo"))
    launches.append(gen_lngemm("mlp1"))
    launches.append(gen_skgemm("mlp2"))
    hdr = open("cdna_kernels/%s.s.ref" % NAME).read().split("\n")
    out = []
    for l in hdr:
        if l.startswith("; @launch") or l.startswith("; Override"):
            continue
        if not l.startswith(";"):
            break
        out.append(l)
    only = sys.argv[2] if len(sys.argv) > 2 else None
    for (n, g, b, lds) in launches:
        out.append("; @launch kernel=%s grid=(%d,1,1) block=(%d,1,1) lds=%d" % (n, g, b, lds))
    out.append('.amdgcn_target "amdgcn-amd-amdhsa--gfx950"')
    out.append(".text")
    out += A.lines
    out.append('.section .rodata,"a"')
    for k in KDS:
        out.append(".p2align 6")
        out.append(k)
    open(sys.argv[1], "w").write("\n".join(out) + "\n")

if __name__ == "__main__":
    main()
```

```python
import sys

NAME = "adaLN_cond__softmax_full_mha__dense_activation_silu__prompt"

def al(x, a=65536): return (x + a - 1) // a * a
MOD_OFF = 0;                 MOD_SZ = 2688 * 4
WQKV_OFF = al(MOD_OFF + MOD_SZ); WQKV_SZ = 48 * 28 * 1024
WO_OFF = al(WQKV_OFF + WQKV_SZ); WO_SZ = 14 * 32 * 1024
W1_OFF = al(WO_OFF + WO_SZ);  W1_SZ = 56 * 28 * 1024
W2_OFF = al(W1_OFF + W1_SZ);  W2_SZ = 14 * 112 * 1024
Q_OFF = al(W2_OFF + W2_SZ);   QKV_SZ = 16 * 64 * 2 * 1024
K_OFF = Q_OFF + QKV_SZ
V_OFF = K_OFF + QKV_SZ
O_OFF = V_OFF + QKV_SZ;       O_SZ = 64 * 32 * 1024
X2_OFF = al(O_OFF + O_SZ);    X_SZ = 2048 * 448 * 2
H1_OFF = al(X2_OFF + X_SZ);   H1_SZ = 64 * 112 * 1024
WS_END = H1_OFF + H1_SZ

import os
STF = os.environ.get("STF", "sc1")
class Asm:
    def __init__(self):
        self.lines = []
        self.uid = 0
    def __call__(self, s):
        for l in s.strip().split("\n"):
            l = l.strip()
            if l.endswith("#plain"):
                l = l[:-6].strip()
            elif STF and l.startswith("buffer_store_dwordx4"):
                l = l + " " + STF
            self.lines.append("    " + l)
    def label(self, l):
        self.lines.append(l + ":")
    def new(self, p="L"):
        self.uid += 1
        return "%s_%d" % (p, self.uid)
    def raw(self, s):
        self.lines.append(s)

A = Asm()

def vr(b, n=1):
    return "v%d" % b if n == 1 else "v[%d:%d]" % (b, b + n - 1)
def sr(b, n=1):
    return "s%d" % b if n == 1 else "s[%d:%d]" % (b, b + n - 1)

P_X, P_WQKV, P_WO, P_BX, P_W1, P_W2, P_C, P_WMOD = 16, 18, 20, 22, 24, 26, 28, 30
P_OUT, P_DBG, P_WS = 32, 34, 36

def kernel_begin(name, nwg):
    NST[0] = 0
    KIDX[0] = len(KDS)
    A.raw(".globl %s" % name)
    A.raw(".p2align 8")
    A.raw(".type %s,@function" % name)
    A.label(name)
    A("s_cmp_ge_u32 s2, %d" % nwg)
    A("s_cbranch_scc1 %s_end" % name)
    A("s_load_dwordx16 s[16:31], s[0:1], 0")
    A("s_load_dwordx4 s[32:35], s[0:1], 64")
    A("s_load_dwordx2 s[36:37], s[0:1], 80")
    if STAMP:
        A("s_memrealtime s[96:97]")
        A("v_mov_b32 v255, 0")

def kernel_end(name):
    A.label(name + "_end")
    A("s_endpgm")

KDS = []
def kernel_desc(name, vgpr, sgpr=100):
    if STAMP: vgpr = 256
    vg = (vgpr + 7) // 8 * 8
    KDS.append(""".amdhsa_kernel %s
  .amdhsa_next_free_vgpr %d
  .amdhsa_next_free_sgpr %d
  .amdhsa_accum_offset %d
  .amdhsa_group_segment_fixed_size 0
  .amdhsa_kernarg_size 88
  .amdhsa_user_sgpr_count 2
  .amdhsa_user_sgpr_kernarg_segment_ptr 1
  .amdhsa_system_sgpr_workgroup_id_x 1
.end_amdhsa_kernel""" % (name, vg, sgpr, vg))

def srd(d, p, off, size):
    if off:
        A("s_add_u32 s%d, s%d, 0x%x" % (d, p, off))
        A("s_addc_u32 s%d, s%d, 0" % (d + 1, p + 1))
    else:
        A("s_mov_b32 s%d, s%d" % (d, p))
        A("s_mov_b32 s%d, s%d" % (d + 1, p + 1))
    A("s_mov_b32 s%d, 0x%x" % (d + 2, size))
    A("s_mov_b32 s%d, 0x20000" % (d + 3))

import os
STAMP = 1 if os.environ.get("STAMP", "") not in ("", "0") else 0
STAMP_OFF = 48 << 20
KIDX = [0]
NST = [0]
def stamp():
    if not STAMP: return
    i = NST[0]
    if i >= 13: return
    NST[0] += 1
    A("s_memtime s[92:93]")
    A("s_waitcnt lgkmcnt(0)")
    A("v_writelane_b32 v255, s92, %d" % i)
def stamp_flush(tmpv=250):
    if not STAMP: return
    stamp()
    srd(72, P_WS, STAMP_OFF + KIDX[0] * 256 * 16 * 64, 256 * 16 * 64)
    A("s_memrealtime s[92:93]")
    A("s_waitcnt lgkmcnt(0)")
    A("v_writelane_b32 v255, s96, 14")
    A("v_writelane_b32 v255, s92, 15")
    A("v_lshrrev_b32 v%d, 6, v0" % tmpv)
    A("s_lshl_b32 s94, s2, 4")
    A("v_add_u32 v%d, s94, v%d" % (tmpv, tmpv))
    A("v_lshlrev_b32 v%d, 6, v%d" % (tmpv, tmpv))
    A("v_and_b32 v%d, 63, v0" % (tmpv + 1))
    A("v_lshl_add_u32 v%d, v%d, 2, v%d" % (tmpv, tmpv + 1, tmpv))
    A("s_mov_b64 exec, 0xffff")
    A("buffer_store_dword v255, v%d, s[72:75], 0 offen" % tmpv)
    A("s_waitcnt vmcnt(0)")
    A("s_mov_b64 exec, -1")

def nops(n):
    while n > 0:
        k = min(n, 16)
        A("s_nop %d" % (k - 1))
        n -= k

def gen_prep():
    name = "prep_kernel"
    NW_MOD, NW_QKV, NW_WO, NW_W1, NW_W2 = 21, 48, 0, 0, 0
    b1 = NW_MOD; b2 = b1 + NW_QKV; b3 = b2 + NW_WO; b4 = b3 + NW_W1; b5 = b4 + NW_W2
    kernel_begin(name, b5)
    A("v_and_b32 v1, 7, v0")
    A("v_bfe_u32 v2, v0, 3, 1")
    A("v_lshrrev_b32 v3, 4, v0")
    A("s_waitcnt lgkmcnt(0)")
    A("s_cmp_lt_u32 s2, %d" % b1)
    A("s_cbranch_scc1 prep_mod")
    A("s_mov_b32 s60, 0x05040100")
    A("s_mov_b32 s61, 0x07060302")
    def common(RS, nunits):
        A("s_mov_b32 s50, %d" % RS)
        A("s_mov_b32 s51, %d" % (2 * RS))
        A("s_mov_b32 s52, %d" % (3 * RS))
        if nunits < 512:
            A("v_cmp_gt_u32 vcc, %d, v0" % nunits)
            A("s_and_saveexec_b64 s[54:55], vcc")
            A("s_cbranch_execz %s_end" % name)
        for grp, vo in ((0, 4), (1, 5)):
            for i in range(4):
                so = "0" if i == 0 else "s%d" % (49 + i)
                A("buffer_load_dwordx2 %s, v%d, s[40:43], %s offen" % (vr(8 + 2 * (grp * 4 + i), 2), vo, so))
        A("v_lshlrev_b32 v6, 6, v0")
        A("s_waitcnt vmcnt(0)")
        for i in range(4):
            sel = "s61" if (i & 1) else "s60"
            for p in range(4):
                A("v_perm_b32 v%d, v%d, v%d, %s" % (24 + 4 * i + p, 8 + 2 * (2 * p + 1) + (i >> 1), 8 + 2 * (2 * p) + (i >> 1), sel))
        for i in range(4):
            A("ds_write_b128 v6, %s offset:%d" % (vr(24 + 4 * i, 4), 16 * i))
        A("v_and_b32 v7, 63, v0")
        A("v_lshrrev_b32 v6, 6, v0")
        A("v_lshlrev_b32 v6, 12, v6")
        A("v_lshl_add_u32 v6, v7, 4, v6")
        A("s_waitcnt lgkmcnt(0)")
        for i in range(4):
            A("ds_read_b128 %s, v6 offset:%d" % (vr(24 + 4 * i, 4), 1024 * i))
        for i in range(4):
            A("s_waitcnt lgkmcnt(%d)" % (3 - i))
            A("buffer_store_dwordx4 %s, v6, s[44:47], s48 offen offset:%d" % (vr(24 + 4 * i, 4), 1024 * i))
        n0 = NST[0]
        stamp_flush()
        NST[0] = n0
        A("s_endpgm")

    A.label("prep_qkv")
    RS = 2688
    A("s_sub_u32 s56, s2, %d" % b1)
    A("s_mul_i32 s57, s56, 171")
    A("s_lshr_b32 s57, s57, 9")
    A("s_mul_i32 s58, s57, 3")
    A("s_sub_u32 s58, s56, s58")
    A("s_mul_i32 s58, s58, 896")
    A("s_mul_i32 s57, s57, 56")
    A("s_add_u32 s58, s58, s57")
    srd(40, P_WQKV, 0, 448 * 1344 * 2)
    srd(44, P_WS, WQKV_OFF, WQKV_SZ)
    A("s_mul_i32 s48, s56, %d" % (28 * 1024))
    A("v_lshlrev_b32 v4, 4, v3")
    A("v_lshl_add_u32 v4, v2, 3, v4")
    A("s_mov_b32 s59, %d" % RS)
    A("v_mul_lo_u32 v4, v4, s59")
    A("v_lshl_add_u32 v4, v1, 3, v4")
    A("v_add_u32 v4, s58, v4")
    A("v_add_u32 v5, %d, v4" % (4 * RS))
    A("v_mov_b32 v7, 0x7f000000")
    A("v_cmp_eq_u32 vcc, 7, v1")
    A("s_nop 1")
    A("v_cndmask_b32 v4, v4, v7, vcc")
    A("v_cndmask_b32 v5, v5, v7, vcc")
    common(RS, 448)

    A.label("prep_mod")
    srd(40, P_WMOD, 0, 448 * 2688 * 2)
    srd(44, P_C, 0, 896)
    srd(48, P_WS, MOD_OFF, MOD_SZ)
    A("v_lshrrev_b32 v1, 6, v0")
    A("v_and_b32 v2, 63, v0")
    A("v_readfirstlane_b32 s56, v1")
    A("s_nop 3")
    A("s_mul_i32 s57, s56, 112")
    A("v_lshlrev_b32 v3, 1, v2")
    A("buffer_load_ushort v4, v3, s[44:47], s57 offen")
    A("s_lshl_b32 s58, s2, 8")
    A("v_lshlrev_b32 v5, 2, v2")
    A("v_add_u32 v5, s58, v5")
    A("s_mul_i32 s59, s56, %d" % (56 * 5376))
    for i in range(56):
        A("buffer_load_dword v%d, v5, s[40:43], s59 offen" % (16 + i))
        A("s_add_u32 s59, s59, 5376")
    A("s_waitcnt vmcnt(56)")
    A("v_lshlrev_b32 v4, 16, v4")
    A("v_mul_f32 v6, 0xbfb8aa3b, v4")
    A("v_exp_f32 v6, v6")
    A("s_nop 0")
    A("v_add_f32 v6, 1.0, v6")
    A("v_rcp_f32 v6, v6")
    A("s_nop 0")
    A("v_mul_f32 v6, v4, v6")
    A("v_mov_b32 v8, 0")
    A("v_mov_b32 v9, 0")
    for i in range(56):
        A("v_readlane_b32 s60, v6, %d" % i)
        A("s_waitcnt vmcnt(%d)" % (55 - i))
        A("v_lshlrev_b32 v10, 16, v%d" % (16 + i))
        A("v_and_b32 v11, 0xffff0000, v%d" % (16 + i))
        A("v_fmac_f32 v8, s60, v10")
        A("v_fmac_f32 v9, s60, v11")
    A("v_lshlrev_b32 v12, 3, v0")
    A("ds_write_b64 v12, v[8:9]")
    A("s_waitcnt lgkmcnt(0)")
    A("s_barrier")
    A("s_cmp_lg_u32 s56, 0")
    A("s_cbranch_scc1 %s_end" % name)
    for w in range(8):
        A("ds_read_b64 %s, v12 offset:%d" % (vr(16 + 2 * w, 2), 512 * w))
    A("s_waitcnt lgkmcnt(0)")
    for w in range(1, 8):
        A("v_add_f32 v16, v16, v%d" % (16 + 2 * w))
        A("v_add_f32 v17, v17, v%d" % (17 + 2 * w))
    A("s_lshl_b32 s58, s2, 7")
    A("v_lshlrev_b32 v3, 1, v2")
    A("v_add_u32 v3, s58, v3")
    A("v_subrev_u32 v10, 448, v3")
    A("v_cmp_gt_u32 vcc, 448, v10")
    A("s_nop 1")
    A("s_mov_b64 s[62:63], vcc")
    A("v_subrev_u32 v11, 1792, v3")
    A("v_cmp_gt_u32 vcc, 448, v11")
    A("s_nop 1")
    A("s_or_b64 vcc, vcc, s[62:63]")
    A("v_add_f32 v18, 1.0, v16")
    A("v_add_f32 v19, 1.0, v17")
    A("s_nop 1")
    A("v_cndmask_b32 v16, v16, v18, vcc")
    A("v_cndmask_b32 v17, v17, v19, vcc")
    A("v_lshlrev_b32 v3, 2, v3")
    A("buffer_store_dwordx2 v[16:17], v3, s[48:51], 0 offen")
    stamp_flush()
    kernel_end(name)
    kernel_desc(name, 80)
    return (name, b5, 512, 32768)

def gen_lngemm(kind):
    name = "qkv_kernel" if kind == "qkv" else "mlp1_kernel"
    NCT = 6 if kind == "qkv" else 7
    MODL = 57344
    kernel_begin(name, 256)
    L = lambda s: "%s_%s" % (name, s)
    A("v_lshrrev_b32 v1, 6, v0")
    A("v_and_b32 v2, 63, v0")
    A("v_readfirstlane_b32 s40, v1")
    A("s_lshr_b32 s43, s2, 3")
    A("s_bfe_u32 s41, s2, 0x20001")
    A("s_lshl_b32 s41, s41, 3")
    A("s_and_b32 s42, s43, 7")
    A("s_add_u32 s41, s41, s42")
    A("s_and_b32 s42, s2, 1")
    A("s_lshl_b32 s42, s42, 2")
    A("s_lshr_b32 s43, s43, 3")
    A("s_add_u32 s42, s42, s43")
    A("v_and_b32 v3, 7, v2")
    A("v_lshrrev_b32 v4, 3, v2")
    A("s_waitcnt lgkmcnt(0)")
    stamp()
    if kind == "qkv":
        srd(44, P_X, 0, X_SZ)
        srd(48, P_WS, MOD_OFF, 3584)
        srd(52, P_WS, WQKV_OFF, WQKV_SZ)
    else:
        srd(44, P_WS, X2_OFF, X_SZ)
        srd(48, P_WS, MOD_OFF + 1344 * 4, 3584)
        srd(52, P_WS, W1_OFF, W1_SZ)
    A("s_lshl_b32 s60, s41, 6")
    A("s_lshl_b32 s61, s40, 3")
    A("s_add_u32 s60, s60, s61")
    A("v_add_u32 v5, s60, v3")
    A("v_mul_u32_u24 v5, 896, v5")
    A("v_lshl_add_u32 v5, v4, 4, v5")
    XR = 8
    for i in range(7):
        A("buffer_load_dwordx4 %s, v5, s[44:47], 0 offen offset:%d" % (vr(XR + 4 * i, 4), 128 * i))
        if os.environ.get("LAT") and i == 0:
            stamp()
            A("s_waitcnt vmcnt(0)")
            stamp()
    if os.environ.get("LAT"):
        stamp()
        A("s_waitcnt vmcnt(0)")
        stamp()
    A("v_lshlrev_b32 v6, 4, v0")
    A("buffer_load_dwordx4 v[36:39], v6, s[48:51], 0 offen")
    WR = 128
    A("v_lshlrev_b32 v7, 4, v2")
    A("s_mul_i32 s62, s42, %d" % NCT)
    A("s_add_u32 s62, s62, s40")
    A("s_mul_i32 s63, s62, %d" % (28 * 1024))
    A("s_lshr_b32 s60, s40, 2")
    A("s_mul_i32 s60, s60, 28672")
    A("s_and_b32 s61, s40, 3")
    A("s_lshl_b32 s61, s61, 7")
    A("s_add_u32 s60, s60, s61")
    A("s_barrier")
    XF = 40
    def ln_phase(withw):
        NPRE = int(os.environ.get("NPRE", "8"))
        wl = []
        for k in range(28):
            wl.append("buffer_load_dwordx4 %s, v7, s[52:55], s63 offen offset:%d" % (vr(WR + 4 * k, 4), 1024 * (k & 3)))
            if (k & 3) == 3:
                wl[-1] += "\ns_add_u32 s63, s63, 4096"
        if not withw: wl = []
        for k in range(min(NPRE, len(wl))):
            A(wl.pop(0))
        A("s_waitcnt vmcnt(%d)" % (NPRE if withw else 0))
        stamp()
        cnt = [0]
        def V(t):
            A(t)
            cnt[0] += 1
            if wl and cnt[0] % int(os.environ.get("PER", "18")) == 0:
                A(wl.pop(0))
        V("v_add_u32 v6, %d, v6" % MODL)
        V("ds_write_b128 v6, v[36:39]")
        for r in range(28):
            V("v_lshlrev_b32 v%d, 16, v%d" % (XF + 2 * r, XR + r))
            V("v_and_b32 v%d, 0xffff0000, v%d" % (XF + 2 * r + 1, XR + r))
        pr = lambda r: vr(r, 2)
        V("v_pk_add_f32 v[96:97], %s, %s" % (pr(XF), pr(XF + 2)))
        V("v_pk_add_f32 v[98:99], %s, %s" % (pr(XF + 4), pr(XF + 6)))
        for e in range(4, 28):
            a = 96 + 2 * (e & 1)
            V("v_pk_add_f32 %s, %s, %s" % (pr(a), pr(a), pr(XF + 2 * e)))
        V("v_pk_add_f32 v[96:97], v[96:97], v[98:99]")
        V("v_add_f32 v96, v96, v97")
        def xreduce(r, t1, t2):
            V("s_nop 1")
            V("v_add_f32_dpp v%d, v%d, v%d row_ror:8 row_mask:0xf bank_mask:0xf" % (t1, r, r))
            V("v_mov_b32 v%d, v%d" % (t2, t1))
            V("s_nop 1")
            V("v_permlane16_swap_b32 v%d, v%d" % (t1, t2))
            V("s_nop 1")
            V("v_add_f32 v%d, v%d, v%d" % (t1, t1, t2))
            V("v_mov_b32 v%d, v%d" % (t2, t1))
            V("s_nop 1")
            V("v_permlane32_swap_b32 v%d, v%d" % (t1, t2))
            V("s_nop 1")
            V("v_add_f32 v%d, v%d, v%d" % (r, t1, t2))
        xreduce(96, 100, 101)
        V("v_mul_f32 v96, 0x%08x, v96" % f2u(-1.0 / 448))
        V("v_mov_b32 v97, v96")
        for e in range(28):
            V("v_pk_add_f32 %s, %s, v[96:97]" % (pr(XF + 2 * e), pr(XF + 2 * e)))
        V("v_pk_mul_f32 v[98:99], %s, %s" % (pr(XF), pr(XF)))
        V("v_pk_mul_f32 v[100:101], %s, %s" % (pr(XF + 2), pr(XF + 2)))
        for e in range(2, 28):
            a = 98 + 2 * (e & 1)
            V("v_pk_fma_f32 %s, %s, %s, %s" % (pr(a), pr(XF + 2 * e), pr(XF + 2 * e), pr(a)))
        V("v_pk_add_f32 v[98:99], v[98:99], v[100:101]")
        V("v_add_f32 v97, v98, v99")
        xreduce(97, 100, 101)
        V("v_mov_b32 v98, 0x%08x" % f2u(1e-5))
        V("v_fmac_f32 v98, 0x%08x, v97" % f2u(1.0 / 448))
        V("v_rsq_f32 v98, v98")
        V("v_lshlrev_b32 v5, 5, v4")
        V("v_add_u32 v5, %d, v5" % MODL)
        V("v_lshrrev_b32 v6, 1, v4")
        V("v_lshlrev_b32 v6, 10, v6")
        V("v_and_b32 v36, 1, v4")
        V("v_lshl_add_u32 v6, v36, 9, v6")
        V("v_lshl_add_u32 v6, v3, 4, v6")
        V("v_add_u32 v6, s60, v6")
        V("v_mov_b32 v99, v98")
        A("s_waitcnt lgkmcnt(0)")
        stamp()
        A("s_barrier")
        stamp()
        def rdmod(i):
            b = 8 + 16 * (i & 1)
            V("ds_read_b128 %s, v5 offset:%d" % (vr(b, 4), 256 * i))
            V("ds_read_b128 %s, v5 offset:%d" % (vr(b + 4, 4), 256 * i + 16))
            V("ds_read_b128 %s, v5 offset:%d" % (vr(b + 8, 4), 1792 + 256 * i))
            V("ds_read_b128 %s, v5 offset:%d" % (vr(b + 12, 4), 1792 + 256 * i + 16))
        rdmod(0)
        for i in range(7):
            b = 8 + 16 * (i & 1)
            for j in range(4):
                V("v_pk_mul_f32 %s, %s, v[98:99]" % (pr(XF + 8 * i + 2 * j), pr(XF + 8 * i + 2 * j)))
            if i + 1 < 7:
                A("s_waitcnt lgkmcnt(1)" if i > 0 else "s_waitcnt lgkmcnt(0)")
                rdmod(i + 1)
            else:
                A("s_waitcnt lgkmcnt(0)")
            for j in range(4):
                V("v_pk_fma_f32 %s, %s, %s, %s" % (pr(XF + 8 * i + 2 * j), pr(XF + 8 * i + 2 * j), pr(b + 8 + 2 * j), pr(b + 2 * j)))
            hb = 100 + 4 * (i & 1)
            for p in range(4):
                V("v_cvt_pk_bf16_f32 v%d, v%d, v%d" % (hb + p, XF + 8 * i + 2 * p, XF + 8 * i + 2 * p + 1))
            V("ds_write_b128 v6, %s offset:%d" % (vr(hb, 4), 4096 * i))
        while wl: A(wl.pop(0))
        A("s_waitcnt lgkmcnt(0)")
        stamp()
        A("s_barrier")
        stamp()
    A("s_cmp_ge_u32 s40, %d" % NCT)
    A("s_cbranch_scc1 %s" % L("now"))
    n0 = NST[0]
    ln_phase(True)
    A("s_branch %s" % L("gemm"))
    A.label(L("now"))
    n1 = NST[0]; NST[0] = n0
    ln_phase(False)
    A("s_endpgm")
    A.label(L("gemm"))
    ACC = 8
    HB = 40
    def gemm(transposed):
        NPF = 3
        def rd(s):
            b = HB + 8 * (s % 4)
            A("ds_read_b128 %s, v7 offset:%d" % (vr(b, 4), s * 1024))
            A("ds_read_b128 %s, v7 offset:%d" % (vr(b + 4, 4), 28672 + s * 1024))
        for s in range(NPF):
            rd(s)
        for s in range(28):
            if s + NPF < 28:
                rd(s + NPF)
                A("s_waitcnt lgkmcnt(%d)" % (2 * NPF))
            else:
                A("s_waitcnt lgkmcnt(%d)" % (2 * (27 - s)))
            b = HB + 8 * (s % 4)
            A("s_waitcnt vmcnt(%d)" % (27 - s))
            for T in range(2):
                c = "0" if s == 0 else vr(ACC + 16 * T, 16)
                w = vr(WR + 4 * s, 4); h = vr(b + 4 * T, 4)
                if transposed:
                    A("v_mfma_f32_32x32x16_bf16 %s, %s, %s, %s" % (vr(ACC + 16 * T, 16), w, h, c))
                else:
                    A("v_mfma_f32_32x32x16_bf16 %s, %s, %s, %s" % (vr(ACC + 16 * T, 16), h, w, c))
        nops(16)
    def pack_store(T, srdreg, soff):
        for p in range(8):
            A("v_cvt_pk_bf16_f32 v%d, v%d, v%d" % (72 + p, ACC + 16 * T + 2 * p, ACC + 16 * T + 2 * p + 1))
        A("buffer_store_dwordx4 v[72:75], v7, s[%d:%d], %s offen" % (srdreg, srdreg + 3, soff))
        A("buffer_store_dwordx4 v[76:79], v7, s[%d:%d], %s offen offset:1024" % (srdreg, srdreg + 3, soff))
        A("s_nop 1")
    if kind == "qkv":
        srd(56, P_WS, Q_OFF, 3 * QKV_SZ)
        A("s_lshl_b32 s64, s42, 1")
        A("s_cmp_ge_u32 s40, 3")
        A("s_cselect_b32 s65, 1, 0")
        A("s_add_u32 s64, s64, s65")
        A("s_mul_i32 s65, s65, 3")
        A("s_sub_u32 s65, s40, s65")
        A("s_mul_i32 s66, s65, 0x%x" % QKV_SZ)
        A("s_lshl_b32 s67, s64, 17")
        A("s_add_u32 s66, s66, s67")
        A("s_lshl_b32 s67, s41, 12")
        A("s_add_u32 s66, s66, s67")
        A("s_add_u32 s67, s66, 2048")
        A("s_cmp_eq_u32 s65, 2")
        A("s_cbranch_scc1 %s" % L("v"))
        gemm(True)
        stamp()
        A("s_cmp_eq_u32 s65, 1")
        A("s_cbranch_scc1 %s" % L("kst"))
        import math
        A("s_mov_b32 s68, 0x%08x" % f2u(math.log2(math.e) / math.sqrt(28.0)))
        for r in range(32):
            A("v_mul_f32 v%d, s68, v%d" % (ACC + r, ACC + r))
        A.label(L("kst"))
        pack_store(0, 56, "s66")
        pack_store(1, 56, "s67")
        n0 = NST[0]
        stamp_flush()
        A("s_endpgm")
        NST[0] = n0
        A.label(L("v"))
        gemm(False)
        stamp()
        A("v_and_b32 v80, 31, v2")
        A("v_cmp_eq_u32 vcc, 28, v80")
        A("v_mov_b32 v81, 1.0")
        A("s_nop 1")
        for r in range(32):
            A("v_cndmask_b32 v%d, v%d, v81, vcc" % (ACC + r, ACC + r))
        pack_store(0, 56, "s66")
        pack_store(1, 56, "s67")
    else:
        srd(56, P_WS, H1_OFF, H1_SZ)
        gemm(True)
        stamp()
        for r in range(32):
            A("v_mul_f32 v%d, 0xbfb8aa3b, v%d" % (80 + r, ACC + r))
        for r in range(32):
            A("v_exp_f32 v%d, v%d" % (80 + r, 80 + r))
        for r in range(32):
            A("v_add_f32 v%d, 1.0, v%d" % (80 + r, 80 + r))
        for r in range(32):
            A("v_rcp_f32 v%d, v%d" % (80 + r, 80 + r))
        for r in range(32):
            A("v_mul_f32 v%d, v%d, v%d" % (ACC + r, ACC + r, 80 + r))
        A("s_lshl_b32 s66, s41, 1")
        A("s_mul_i32 s66, s66, %d" % (112 * 1024))
        A("s_lshl_b32 s67, s62, 11")
        A("s_add_u32 s66, s66, s67")
        A("s_add_u32 s67, s66, %d" % (112 * 1024))
        pack_store(0, 56, "s66")
        pack_store(1, 56, "s67")
    stamp_flush()
    kernel_end(name)
    kernel_desc(name, 240)
    return (name, 256, 512, 57344 + 8192)

import struct
def f2u(f):
    return struct.unpack("<I", struct.pack("<f", f))[0]

def gen_attn():
    name = "attn_kernel"
    kernel_begin(name, 256)
    L = lambda s: "%s_%s" % (name, s)
    FLAG = 131072
    A("v_lshrrev_b32 v1, 6, v0")
    A("v_and_b32 v2, 63, v0")
    A("v_readfirstlane_b32 s40, v1")
    A("s_and_b32 s41, s2, 15")
    A("s_lshr_b32 s42, s2, 4")
    A("v_lshlrev_b32 v3, 4, v2")
    A("v_mov_b32 v4, %d" % FLAG)
    A("v_mov_b32 v5, 0")
    A("ds_write_b32 v4, v5")
    A("s_waitcnt lgkmcnt(0)")
    srd(44, P_WS, Q_OFF, QKV_SZ)
    srd(48, P_WS, K_OFF, QKV_SZ)
    srd(52, P_WS, V_OFF, QKV_SZ)
    srd(56, P_WS, O_OFF, O_SZ)
    A("s_lshl_b32 s60, s42, 2")
    A("s_add_u32 s60, s60, s40")
    A("s_lshl_b32 s61, s41, 6")
    A("s_add_u32 s61, s61, s60")
    A("s_lshl_b32 s61, s61, 11")
    QF = 8
    A("buffer_load_dwordx4 %s, v3, s[44:47], s61 offen" % vr(QF, 4))
    A("buffer_load_dwordx4 %s, v3, s[44:47], s61 offen offset:1024" % vr(QF + 4, 4))
    A("s_lshl_b32 s63, s40, 11")
    def dma_init():
        A("s_lshl_b32 s62, s41, 17")
        A("s_add_u32 s62, s62, s63")
        A("s_mov_b32 s64, 0")
    def dma():
        A("s_add_u32 s65, s64, s63")
        A("s_mov_b32 m0, s65")
        A("s_add_u32 s65, s65, 8192")
        A("buffer_load_dwordx4 v3, s[48:51], s62 offen lds")
        A("buffer_load_dwordx4 v3, s[48:51], s62 offen offset:1024 lds")
        A("s_mov_b32 m0, s65")
        A("s_add_u32 s64, s64, 16384")
        A("buffer_load_dwordx4 v3, s[52:55], s62 offen lds")
        A("buffer_load_dwordx4 v3, s[52:55], s62 offen offset:1024 lds")
        A("s_add_u32 s62, s62, 8192")
        A("s_and_b32 s64, s64, 0xffff")
    O = 16
    S = [32, 48]; P = [64, 72]; KF = [80, 88]; VF = [96, 104]; NM = 112
    VC, VN = 4, 5
    def mfma(d, a, b, c):
        A("v_mfma_f32_32x32x16_bf16 %s, %s, %s, %s" % (vr(d, 16), vr(a, 4), vr(b, 4), c if isinstance(c, str) else vr(c, 16)))
    CH = int(os.environ.get("ATT_CH", "8"))
    NCH = 64 // CH
    CB = CH * 2048
    NSL = 4
    SLB = 2 * CB
    PW = CB // 4 // 1024
    vmq = ["q", "q"]
    def VM(l, tag):
        A(l); vmq.append(tag)
    def vmwait(tag, extra=""):
        idx = max(i for i, t in enumerate(vmq) if t == tag)
        A("s_waitcnt vmcnt(%d) %s" % (len(vmq) - 1 - idx, extra))
    A("s_mul_i32 s69, s40, %d" % (CB // 4))
    A("s_lshl_b32 s70, s41, 17")
    A("s_add_u32 s70, s70, s69")
    def fdma(c):
        out = []
        slot = (c % NSL) * SLB
        for op, sr_ in ((0, 48), (1, 52)):
            for p in range(PW):
                if p % 4 == 0:
                    out.append(("s_add_u32 s71, s69, %d" % (slot + op * CB + p * 1024), None))
                    out.append(("s_mov_b32 m0, s71", None))
                    out.append(("s_add_u32 s72, s70, %d" % (c * CB + p * 1024), None))
                out.append(("buffer_load_dwordx4 v3, s[%d:%d], s72 offen offset:%d lds" % (sr_, sr_ + 3, 1024 * (p % 4)), "c%d" % c))
        return out
    pend = []
    def drip(n):
        k = 0
        while pend and k < n:
            l, tag = pend.pop(0)
            if tag: VM(l, tag); k += 1
            else: A(l)
    pend += fdma(0); drip(1000)
    pend += fdma(1) + fdma(2)
    RL = 128
    A("s_lshl_b32 s73, s2, 2")
    A("s_add_u32 s73, s73, s40")
    A("s_min_u32 s74, s73, 895")
    A("s_cmp_lt_u32 s74, 112")
    A("s_cbranch_scc1 %s" % L("rl_wo"))
    A("s_cmp_lt_u32 s74, 504")
    A("s_cbranch_scc1 %s" % L("rl_w1"))
    A("s_sub_u32 s74, s74, 504")
    A("s_mul_i32 s75, s74, 2341")
    A("s_lshr_b32 s75, s75, 16")
    A("s_mul_i32 s76, s75, 28")
    A("s_sub_u32 s76, s74, s76")
    srd(84, P_W2, 0, 1792 * 448 * 2)
    A("s_mov_b32 s77, 896")
    A("s_mov_b32 s78, 32")
    A("s_mov_b32 s79, 4")
    A("s_mul_i32 s80, s75, 112")
    A("s_mov_b32 s81, 0x%x" % W2_OFF)
    A("s_mov_b32 s82, 0")
    A("s_branch %s" % L("rl_go"))
    A.label(L("rl_w1"))
    A("s_sub_u32 s74, s74, 112")
    A("s_mul_i32 s75, s74, 9363")
    A("s_lshr_b32 s75, s75, 16")
    A("s_mul_i32 s76, s75, 7")
    A("s_sub_u32 s76, s74, s76")
    srd(84, P_W1, 0, 448 * 1792 * 2)
    A("s_mov_b32 s77, 3584")
    A("s_mov_b32 s78, 32")
    A("s_mov_b32 s79, 8")
    A("s_mul_i32 s80, s75, 28")
    A("s_mov_b32 s81, 0x%x" % W1_OFF)
    A("s_mov_b32 s82, 0")
    A("s_branch %s" % L("rl_go"))
    A.label(L("rl_wo"))
    A("s_lshr_b32 s75, s74, 3")
    A("s_and_b32 s76, s74, 7")
    srd(84, P_WO, 0, 448 * 448 * 2)
    A("s_mov_b32 s77, 896")
    A("s_mov_b32 s78, 28")
    A("s_mov_b32 s79, 4")
    A("s_lshl_b32 s80, s75, 5")
    A("s_mov_b32 s81, 0x%x" % WO_OFF)
    A("s_mov_b32 s82, 1")
    A.label(L("rl_go"))
    srd(88, P_WS, 0, W2_OFF + W2_SZ)
    A("s_cmp_ge_u32 s73, 896")
    A("s_cselect_b32 s86, 0, s86")
    A("s_cselect_b32 s90, 0, s90")
    A("s_lshl_b32 s83, s76, 2")
    A("s_add_u32 s80, s80, s83")
    A("s_lshl_b32 s80, s80, 10")
    A("s_add_u32 s81, s81, s80")
    A("v_and_b32 v%d, 7, v2" % RL)
    A("v_bfe_u32 v%d, v2, 3, 1" % (RL + 1))
    A("v_lshrrev_b32 v%d, 4, v2" % (RL + 2))
    A("v_add_u32 v%d, s83, v%d" % (RL + 2, RL + 2))
    A("v_lshrrev_b32 v%d, 1, v%d" % (RL + 3, RL + 2))
    A("v_mul_lo_u32 v%d, v%d, s78" % (RL + 3, RL + 3))
    A("v_and_b32 v%d, 1, v%d" % (RL + 4, RL + 2))
    A("v_lshl_add_u32 v%d, v%d, 4, v%d" % (RL + 3, RL + 4, RL + 3))
    A("v_mul_lo_u32 v%d, v%d, s79" % (RL + 5, RL + 1))
    A("v_add_u32 v%d, v%d, v%d" % (RL + 3, RL + 3, RL + 5))
    A("v_mul_lo_u32 v%d, v%d, s77" % (RL + 3, RL + 3))
    A("v_lshl_add_u32 v%d, v%d, 3, v%d" % (RL + 3, RL, RL + 3))
    A("s_lshl_b32 s83, s75, 6")
    A("v_add_u32 v%d, s83, v%d" % (RL + 3, RL + 3))
    A("s_sub_u32 s83, 12, s79")
    A("s_mul_i32 s83, s83, s77")
    A("v_add_u32 v%d, s83, v%d" % (RL + 5, RL + 3))
    A("v_and_b32 v%d, v%d, v%d" % (RL + 4, RL + 4, RL + 1))
    A("v_and_b32 v%d, s82, v%d" % (RL + 4, RL + 4))
    A("v_mov_b32 v%d, 0x7f000000" % (RL + 6))
    A("v_cmp_eq_u32 vcc, 1, v%d" % (RL + 4))
    A("s_lshl_b32 s78, s77, 1")
    A("s_add_u32 s79, s78, s77")
    A("v_cndmask_b32 v%d, v%d, v%d, vcc" % (RL + 5, RL + 5, RL + 6))
    def rl_loads():
        for grp, vo in ((0, RL + 3), (1, RL + 5)):
            for i, so in enumerate(("0", "s77", "s78", "s79")):
                VM("buffer_load_dwordx2 %s, v%d, s[84:87], %s offen" % (vr(RL + 8 + 2 * (grp * 4 + i), 2), vo, so), "rl")
    def rl_process():
        vmwait("rl")
        A("s_mov_b32 s74, 0x05040100")
        A("s_mov_b32 s75, 0x07060302")
        for i in range(4):
            sel = "s75" if (i & 1) else "s74"
            for p in range(4):
                A("v_perm_b32 v%d, v%d, v%d, %s" % (RL + 24 + 4 * i + p, RL + 8 + 2 * (2 * p + 1) + (i >> 1), RL + 8 + 2 * (2 * p) + (i >> 1), sel))
        A("s_lshl_b32 s76, s40, 12")
        A("s_add_u32 s76, s76, %d" % (131072 + 64))
        A("v_lshlrev_b32 v%d, 6, v2" % RL)
        A("v_add_u32 v%d, s76, v%d" % (RL, RL))
        A("v_add_u32 v%d, s76, v3" % (RL + 1))
        for i in range(4):
            A("ds_write_b128 v%d, %s offset:%d" % (RL, vr(RL + 24 + 4 * i, 4), 16 * i))
        A("s_waitcnt lgkmcnt(0)")
        for i in range(4):
            A("ds_read_b128 %s, v%d offset:%d" % (vr(RL + 24 + 4 * i, 4), RL + 1, 1024 * i))
        for i in range(4):
            A("s_waitcnt lgkmcnt(%d)" % (3 - i))
            VM("buffer_store_dwordx4 %s, v3, s[88:91], s81 offen offset:%d #plain" % (vr(RL + 24 + 4 * i, 4), 1024 * i), "rs")
    for r in range(16):
        A("v_mov_b32 v%d, 0" % (O + r))
    for r in range(8):
        A("v_mov_b32 v%d, 0" % (P[1] + r))
        A("v_mov_b32 v%d, 0" % (VF[1] + r))
    A("v_add_u32 v4, 0x10000, v3")
    def lds(dst, addr):
        if addr >= 65536:
            A("ds_read_b128 %s, v4 offset:%d" % (vr(dst, 4), addr - 65536))
        else:
            A("ds_read_b128 %s, v3 offset:%d" % (vr(dst, 4), addr))
    def kaddr(i): return ((i // CH) % NSL) * SLB + (i % CH) * 2048
    def vaddr(i): return ((i // CH) % NSL) * SLB + CB + (i % CH) * 2048
    stamp()
    vmwait("c0")
    A("s_barrier")
    stamp()
    drip(2 * PW)
    lds(KF[0], kaddr(0)); lds(KF[0] + 4, kaddr(0) + 1024)
    lds(KF[1], kaddr(1)); lds(KF[1] + 4, kaddr(1) + 1024)
    A("s_waitcnt lgkmcnt(2)")
    mfma(S[0], KF[0], QF, "0")
    mfma(S[0], KF[0] + 4, QF + 4, S[0])
    nops(16)
    s0 = S[0]
    A("v_max3_f32 v6, v%d, v%d, v%d" % (s0, s0 + 1, s0 + 2))
    for r in range(3, 15, 2):
        A("v_max3_f32 v6, v6, v%d, v%d" % (s0 + r, s0 + r + 1))
    A("v_max_f32 v6, v6, v%d" % (s0 + 15))
    A("v_mov_b32 v7, v6")
    A("s_nop 1")
    A("v_permlane32_swap_b32 v6, v7")
    A("s_nop 1")
    A("v_max_f32 v6, v6, v7")
    for r in range(16):
        A("v_sub_f32 v%d, 0, v6" % (NM + r))
    for r in range(16):
        A("v_sub_f32 v%d, v%d, v6" % (s0 + r, s0 + r))
    stamp()
    for i in range(64):
        c, t = i // CH, i % CH
        b = i & 1
        sc, sn = S[b], S[b ^ 1]
        pc, pp = P[b], P[b ^ 1]
        kn = KF[b ^ 1]; kl = KF[b]; vl = VF[b]; vp = VF[b ^ 1]
        if t == CH - 2 and c + 1 < NCH:
            assert not pend
            vmwait("c%d" % (c + 1), "lgkmcnt(0)")
            A("s_barrier")
            if c + 3 < NCH:
                pend += fdma(c + 3)
        else:
            A("s_waitcnt lgkmcnt(0)")
        if i == 12: rl_loads()
        if i == 34: rl_process()
        def expcvt(q):
            for r in range(4 * q, 4 * q + 4):
                A("v_exp_f32 v%d, v%d" % (sc + r, sc + r))
            A("v_cvt_pk_bf16_f32 v%d, v%d, v%d" % (pc + 2 * q, sc + 4 * q, sc + 4 * q + 1))
            A("v_cvt_pk_bf16_f32 v%d, v%d, v%d" % (pc + 2 * q + 1, sc + 4 * q + 2, sc + 4 * q + 3))
        if i + 1 < 64: mfma(sn, kn, QF, NM)
        if i + 2 < 64:
            lds(kl, kaddr(i + 2)); lds(kl + 4, kaddr(i + 2) + 1024)
        expcvt(0)
        if i > 0: mfma(O, vp, pp, O)
        lds(vl, vaddr(i)); lds(vl + 4, vaddr(i) + 1024)
        drip(1)
        expcvt(1)
        if i + 1 < 64: mfma(sn, kn + 4, QF + 4, sn)
        drip(1)
        expcvt(2)
        if i > 0: mfma(O, vp + 4, pp + 4, O)
        expcvt(3)
    assert not pend
    stamp()
    A("s_waitcnt lgkmcnt(0)")
    mfma(O, VF[1], P[1], O)
    mfma(O, VF[1] + 4, P[1] + 4, O)
    nops(16)
    A("v_mov_b32 v6, v%d" % (O + 12))
    A("v_mov_b32 v7, v%d" % (O + 12))
    A("s_nop 1")
    A("v_permlane32_swap_b32 v6, v7")
    A("v_and_b32 v6, 0x7fffffff, v%d" % O)
    for r in range(1, 16):
        A("v_add_f32 v6, v6, abs(v%d)" % (O + r))
    A("v_add_f32 v6, v6, v7")
    A("v_mov_b32 v1, 0x7b800000")
    A("v_cmp_nlt_f32 vcc, v6, v1")
    A("s_nop 3")
    A("s_cmp_eq_u64 vcc, 0")
    A("s_cbranch_scc1 %s" % L("ok"))
    A("v_mov_b32 v4, %d" % FLAG)
    A("v_mov_b32 v5, 1")
    A("ds_write_b32 v4, v5")
    A.label(L("ok"))
    A("v_mov_b32 v4, %d" % FLAG)
    A("s_waitcnt lgkmcnt(0)")
    A("s_barrier")
    A("ds_read_b32 v5, v4")
    A("s_waitcnt lgkmcnt(0)")
    A("v_readfirstlane_b32 s68, v5")
    A("s_nop 3")
    A("s_cmp_eq_u32 s68, 0")
    A("s_cbranch_scc1 %s" % L("epi"))
    stamp()
    A("s_barrier")
    dma_init()
    dma(); dma(); dma()
    S0 = 32; KF0 = 48; VF0 = 56; P0 = 64
    for r in range(16):
        A("v_mov_b32 v%d, 0" % (O + r))
    A("v_mov_b32 v72, 0xff800000")
    A("s_mov_b32 s66, 0")
    A("s_mov_b32 s67, 0")
    A.label(L("loop"))
    A("s_cmp_ge_u32 s66, 13")
    A("s_cbranch_scc1 %s" % L("w0"))
    A("s_waitcnt vmcnt(8)")
    A("s_barrier")
    dma()
    A("s_branch %s" % L("go"))
    A.label(L("w0"))
    A("s_waitcnt vmcnt(0)")
    A("s_barrier")
    A.label(L("go"))
    A("v_add_u32 v4, s67, v3")
    for t in range(4):
        A("ds_read_b128 %s, v4 offset:%d" % (vr(KF0, 4), 2048 * t))
        A("ds_read_b128 %s, v4 offset:%d" % (vr(KF0 + 4, 4), 2048 * t + 1024))
        A("ds_read_b128 %s, v4 offset:%d" % (vr(VF0, 4), 8192 + 2048 * t))
        A("ds_read_b128 %s, v4 offset:%d" % (vr(VF0 + 4, 4), 8192 + 2048 * t + 1024))
        A("s_waitcnt lgkmcnt(2)")
        mfma(S0, KF0, QF, "0")
        mfma(S0, KF0 + 4, QF + 4, S0)
        nops(16)
        A("v_max3_f32 v73, v%d, v%d, v%d" % (S0, S0 + 1, S0 + 2))
        for r in range(3, 15, 2):
            A("v_max3_f32 v73, v73, v%d, v%d" % (S0 + r, S0 + r + 1))
        A("v_max_f32 v73, v73, v%d" % (S0 + 15))
        A("v_mov_b32 v74, v73")
        A("s_nop 1")
        A("v_permlane32_swap_b32 v73, v74")
        A("s_nop 1")
        A("v_max3_f32 v73, v73, v74, v72")
        A("v_sub_f32 v74, v72, v73")
        A("v_exp_f32 v74, v74")
        A("v_mov_b32 v72, v73")
        for r in range(16):
            A("v_sub_f32 v%d, v%d, v73" % (S0 + r, S0 + r))
        for r in range(16):
            A("v_exp_f32 v%d, v%d" % (S0 + r, S0 + r))
        for r in range(16):
            A("v_mul_f32 v%d, v%d, v74" % (O + r, O + r))
        for p in range(8):
            A("v_cvt_pk_bf16_f32 v%d, v%d, v%d" % (P0 + p, S0 + 2 * p, S0 + 2 * p + 1))
        A("s_waitcnt lgkmcnt(0)")
        A("s_nop 1")
        mfma(O, VF0, P0, O)
        mfma(O, VF0 + 4, P0 + 4, O)
        nops(16)
    A("s_add_u32 s67, s67, 16384")
    A("s_and_b32 s67, s67, 0xffff")
    A("s_add_u32 s66, s66, 1")
    A("s_cmp_lt_u32 s66, 16")
    A("s_cbranch_scc1 %s" % L("loop"))
    A("v_mov_b32 v6, v%d" % (O + 12))
    A("v_mov_b32 v7, v%d" % (O + 12))
    A("s_nop 1")
    A("v_permlane32_swap_b32 v6, v7")
    A.label(L("epi"))
    A("s_nop 1")
    A("v_rcp_f32 v7, v7")
    A("s_nop 0")
    for r in range(16):
        A("v_mul_f32 v%d, v%d, v7" % (O + r, O + r))
    for p in range(8):
        A("v_cvt_pk_bf16_f32 v%d, v%d, v%d" % (64 + p, O + 2 * p, O + 2 * p + 1))
    A("s_lshl_b32 s60, s60, 5")
    A("s_lshl_b32 s61, s41, 1")
    A("s_add_u32 s60, s60, s61")
    A("s_lshl_b32 s60, s60, 10")
    A("buffer_store_dwordx4 %s, v3, s[56:59], s60 offen" % vr(64, 4))
    A("buffer_store_dwordx4 %s, v3, s[56:59], s60 offen offset:1024" % vr(68, 4))
    stamp_flush()
    kernel_end(name)
    kernel_desc(name, 176)
    return (name, 256, 256, 131072 + 64 + 16384)

def gen_skgemm(kind):
    name = "wo_kernel" if kind == "wo" else "mlp2_kernel"
    KS = 32 if kind == "wo" else 112
    KW = KS // 8
    kernel_begin(name, 224)
    A("v_lshrrev_b32 v1, 6, v0")
    A("v_and_b32 v2, 63, v0")
    A("v_readfirstlane_b32 s40, v1")
    A("s_and_b32 s41, s2, 31")
    A("s_lshr_b32 s42, s2, 5")
    A("v_lshlrev_b32 v3, 4, v2")
    A("s_waitcnt lgkmcnt(0)")
    if kind == "wo":
        srd(44, P_WS, O_OFF, O_SZ)
        srd(48, P_WS, WO_OFF, WO_SZ)
        srd(52, P_X, 0, X_SZ)
        srd(56, P_WS, MOD_OFF + 896 * 4, 1792)
        srd(60, P_WS, X2_OFF, X_SZ)
    else:
        srd(44, P_WS, H1_OFF, H1_SZ)
        srd(48, P_WS, W2_OFF, W2_SZ)
        srd(52, P_WS, X2_OFF, X_SZ)
        srd(56, P_WS, MOD_OFF + 2240 * 4, 1792)
        srd(60, P_OUT, 0, X_SZ)
    A("s_mul_i32 s64, s40, %d" % (KW * 1024))
    A("s_mul_i32 s65, s41, %d" % (2 * KS * 1024))
    A("s_add_u32 s65, s65, s64")
    A("s_add_u32 s66, s65, %d" % (KS * 1024))
    A("s_mul_i32 s67, s42, %d" % (2 * KS * 1024))
    A("s_add_u32 s67, s67, s64")
    A("s_add_u32 s68, s67, %d" % (KS * 1024))
    NB = min(KW, 8)
    FB = 80
    ACC = 8
    def ld(s):
        b = FB + 16 * (s % NB)
        A("buffer_load_dwordx4 %s, v3, s[44:47], s65 offen offset:%d" % (vr(b, 4), 1024 * (s & 3)))
        A("buffer_load_dwordx4 %s, v3, s[44:47], s66 offen offset:%d" % (vr(b + 4, 4), 1024 * (s & 3)))
        A("buffer_load_dwordx4 %s, v3, s[48:51], s67 offen offset:%d" % (vr(b + 8, 4), 1024 * (s & 3)))
        A("buffer_load_dwordx4 %s, v3, s[48:51], s68 offen offset:%d" % (vr(b + 12, 4), 1024 * (s & 3)))
        if (s & 3) == 3:
            for r in (65, 66, 67, 68):
                A("s_add_u32 s%d, s%d, 4096" % (r, r))
    for s in range(NB):
        ld(s)
    issued = NB
    for s in range(KW):
        A("s_waitcnt vmcnt(%d)" % (4 * (issued - s - 1)))
        b = FB + 16 * (s % NB)
        for T in range(2):
            for C in range(2):
                acc = vr(ACC + 16 * (2 * T + C), 16)
                c = "0" if s == 0 else acc
                A("v_mfma_f32_32x32x16_bf16 %s, %s, %s, %s" % (acc, vr(b + 8 + 4 * C, 4), vr(b + 4 * T, 4), c))
        if issued < KW:
            ld(issued)
            issued += 1
    nops(16)
    A("v_and_b32 v4, 31, v2")
    A("v_mul_u32_u24 v4, 272, v4")
    A("v_lshrrev_b32 v5, 5, v2")
    A("v_lshl_add_u32 v4, v5, 4, v4")
    A("s_mul_i32 s69, s40, %d" % (64 * 272))
    A("v_add_u32 v4, s69, v4")
    for T in range(2):
        for C in range(2):
            for q in range(4):
                A("ds_write_b128 v4, %s offset:%d" % (vr(ACC + 16 * (2 * T + C) + 4 * q, 4), T * 32 * 272 + C * 128 + q * 32))
    A("v_lshrrev_b32 v5, 3, v0")
    A("v_and_b32 v6, 7, v0")
    A("s_lshl_b32 s69, s41, 6")
    A("v_add_u32 v7, s69, v5")
    A("v_mul_u32_u24 v7, 896, v7")
    A("v_lshl_add_u32 v7, v6, 4, v7")
    A("s_lshl_b32 s70, s42, 7")
    A("buffer_load_dwordx4 v[72:75], v7, s[52:55], s70 offen")
    A("v_lshlrev_b32 v76, 5, v6")
    A("s_lshl_b32 s71, s42, 8")
    A("buffer_load_dwordx4 v[80:83], v76, s[56:59], s71 offen")
    A("buffer_load_dwordx4 v[84:87], v76, s[56:59], s71 offen offset:16")
    A("v_mul_u32_u24 v4, 272, v5")
    A("v_lshl_add_u32 v4, v6, 5, v4")
    A("s_waitcnt lgkmcnt(0)")
    A("s_barrier")
    for w in range(8):
        if w * 64 * 272 + 16 < 65536 - 16:
            A("ds_read_b128 %s, v4 offset:%d" % (vr(88 + 8 * w, 4), w * 64 * 272))
            A("ds_read_b128 %s, v4 offset:%d" % (vr(92 + 8 * w, 4), w * 64 * 272 + 16))
        else:
            if w == 4:
                A("v_add_u32 v4, %d, v4" % (4 * 64 * 272))
            A("ds_read_b128 %s, v4 offset:%d" % (vr(88 + 8 * w, 4), (w - 4) * 64 * 272))
            A("ds_read_b128 %s, v4 offset:%d" % (vr(92 + 8 * w, 4), (w - 4) * 64 * 272 + 16))
    A("s_waitcnt lgkmcnt(0)")
    for w in range(1, 8):
        for j in range(8):
            A("v_add_f32 v%d, v%d, v%d" % (88 + j, 88 + j, 88 + 8 * w + j))
    A("s_waitcnt vmcnt(0)")
    for p in range(4):
        A("v_lshlrev_b32 v%d, 16, v%d" % (100 + 2 * p, 72 + p))
        A("v_and_b32 v%d, 0xffff0000, v%d" % (101 + 2 * p, 72 + p))
    for j in range(8):
        A("v_fmac_f32 v%d, v%d, v%d" % (100 + j, 88 + j, 80 + j))
    for p in range(4):
        A("v_cvt_pk_bf16_f32 v%d, v%d, v%d" % (108 + p, 100 + 2 * p, 101 + 2 * p))
    A("buffer_store_dwordx4 v[108:111], v7, s[60:63], s70 offen")
    stamp_flush()
    kernel_end(name)
    kernel_desc(name, max(FB + 16 * NB, 160))
    return (name, 224, 512, 8 * 64 * 272)

def main():
    launches = []
    launches.append(gen_prep())
    launches.append(gen_lngemm("qkv"))
    launches.append(gen_attn())
    launches.append(gen_skgemm("wo"))
    launches.append(gen_lngemm("mlp1"))
    launches.append(gen_skgemm("mlp2"))
    hdr = open("cdna_kernels/%s.s.ref" % NAME).read().split("\n")
    out = []
    for l in hdr:
        if l.startswith("; @launch") or l.startswith("; Override"):
            continue
        if not l.startswith(";"):
            break
        out.append(l)
    only = sys.argv[2] if len(sys.argv) > 2 else None
    for (n, g, b, lds) in launches:
        out.append("; @launch kernel=%s grid=(%d,1,1) block=(%d,1,1) lds=%d" % (n, g, b, lds))
        if os.environ.get("DUP", "") and os.environ["DUP"] in n:
            out.append("; @launch kernel=%s grid=(%d,1,1) block=(%d,1,1) lds=%d" % (n, g, b, lds))
    out.append('.amdgcn_target "amdgcn-amd-amdhsa--gfx950"')
    out.append(".text")
    out += A.lines
    out.append('.section .rodata,"a"')
    for k in KDS:
        out.append(".p2align 6")
        out.append(k)
    open(sys.argv[1], "w").write("\n".join(out) + "\n")

if __name__ == "__main__":
    main()
```

```python
import sys

NAME = "adaLN_cond__softmax_full_mha__dense_activation_silu__prompt"

def al(x, a=65536): return (x + a - 1) // a * a
MOD_OFF = 0;                 MOD_SZ = 2688 * 4
WQKV_OFF = al(MOD_OFF + MOD_SZ); WQKV_SZ = 48 * 28 * 1024
WO_OFF = al(WQKV_OFF + WQKV_SZ); WO_SZ = 14 * 32 * 1024
W1_OFF = al(WO_OFF + WO_SZ);  W1_SZ = 56 * 28 * 1024
W2_OFF = al(W1_OFF + W1_SZ);  W2_SZ = 14 * 112 * 1024
Q_OFF = al(W2_OFF + W2_SZ);   QKV_SZ = 16 * 64 * 2 * 1024
K_OFF = Q_OFF + QKV_SZ
V_OFF = K_OFF + QKV_SZ
O_OFF = V_OFF + QKV_SZ;       O_SZ = 64 * 32 * 1024
X2_OFF = al(O_OFF + O_SZ);    X_SZ = 2048 * 448 * 2
H1_OFF = al(X2_OFF + X_SZ);   H1_SZ = 64 * 112 * 1024
WS_END = H1_OFF + H1_SZ

import os
STF = os.environ.get("STF", "sc1")
class Asm:
    def __init__(self):
        self.lines = []
        self.uid = 0
    def __call__(self, s):
        for l in s.strip().split("\n"):
            l = l.strip()
            if l.endswith("#plain"):
                l = l[:-6].strip()
            elif STF and l.startswith("buffer_store_dwordx4"):
                l = l + " " + STF
            self.lines.append("    " + l)
    def label(self, l):
        self.lines.append(l + ":")
    def new(self, p="L"):
        self.uid += 1
        return "%s_%d" % (p, self.uid)
    def raw(self, s):
        self.lines.append(s)

A = Asm()

def vr(b, n=1):
    return "v%d" % b if n == 1 else "v[%d:%d]" % (b, b + n - 1)
def sr(b, n=1):
    return "s%d" % b if n == 1 else "s[%d:%d]" % (b, b + n - 1)

P_X, P_WQKV, P_WO, P_BX, P_W1, P_W2, P_C, P_WMOD = 16, 18, 20, 22, 24, 26, 28, 30
P_OUT, P_DBG, P_WS = 32, 34, 36

def kernel_begin(name, nwg):
    NST[0] = 0
    KIDX[0] = len(KDS)
    A.raw(".globl %s" % name)
    A.raw(".p2align 8")
    A.raw(".type %s,@function" % name)
    A.label(name)
    A("s_cmp_ge_u32 s2, %d" % nwg)
    A("s_cbranch_scc1 %s_end" % name)
    A("s_load_dwordx16 s[16:31], s[0:1], 0")
    A("s_load_dwordx4 s[32:35], s[0:1], 64")
    A("s_load_dwordx2 s[36:37], s[0:1], 80")
    if STAMP:
        A("s_memrealtime s[96:97]")
        A("v_mov_b32 v255, 0")

def kernel_end(name):
    A.label(name + "_end")
    A("s_endpgm")

KDS = []
def kernel_desc(name, vgpr, sgpr=100):
    if STAMP: vgpr = 256
    vg = (vgpr + 7) // 8 * 8
    KDS.append(""".amdhsa_kernel %s
  .amdhsa_next_free_vgpr %d
  .amdhsa_next_free_sgpr %d
  .amdhsa_accum_offset %d
  .amdhsa_group_segment_fixed_size 0
  .amdhsa_kernarg_size 88
  .amdhsa_user_sgpr_count 2
  .amdhsa_user_sgpr_kernarg_segment_ptr 1
  .amdhsa_system_sgpr_workgroup_id_x 1
.end_amdhsa_kernel""" % (name, vg, sgpr, vg))

def srd(d, p, off, size):
    if off:
        A("s_add_u32 s%d, s%d, 0x%x" % (d, p, off))
        A("s_addc_u32 s%d, s%d, 0" % (d + 1, p + 1))
    else:
        A("s_mov_b32 s%d, s%d" % (d, p))
        A("s_mov_b32 s%d, s%d" % (d + 1, p + 1))
    A("s_mov_b32 s%d, 0x%x" % (d + 2, size))
    A("s_mov_b32 s%d, 0x20000" % (d + 3))

import os
STAMP = 1 if os.environ.get("STAMP", "") not in ("", "0") else 0
STAMP_OFF = 48 << 20
KIDX = [0]
NST = [0]
def stamp():
    if not STAMP: return
    i = NST[0]
    if i >= 13: return
    NST[0] += 1
    A("s_memtime s[92:93]")
    A("s_waitcnt lgkmcnt(0)")
    A("v_writelane_b32 v255, s92, %d" % i)
def stamp_flush(tmpv=250):
    if not STAMP: return
    stamp()
    srd(72, P_WS, STAMP_OFF + KIDX[0] * 256 * 16 * 64, 256 * 16 * 64)
    A("s_memrealtime s[92:93]")
    A("s_waitcnt lgkmcnt(0)")
    A("v_writelane_b32 v255, s96, 14")
    A("v_writelane_b32 v255, s92, 15")
    A("v_lshrrev_b32 v%d, 6, v0" % tmpv)
    A("s_lshl_b32 s94, s2, 4")
    A("v_add_u32 v%d, s94, v%d" % (tmpv, tmpv))
    A("v_lshlrev_b32 v%d, 6, v%d" % (tmpv, tmpv))
    A("v_and_b32 v%d, 63, v0" % (tmpv + 1))
    A("v_lshl_add_u32 v%d, v%d, 2, v%d" % (tmpv, tmpv + 1, tmpv))
    A("s_mov_b64 exec, 0xffff")
    A("buffer_store_dword v255, v%d, s[72:75], 0 offen" % tmpv)
    A("s_waitcnt vmcnt(0)")
    A("s_mov_b64 exec, -1")

def nops(n):
    while n > 0:
        k = min(n, 16)
        A("s_nop %d" % (k - 1))
        n -= k

def gen_prep():
    name = "prep_kernel"
    NW_MOD, NW_QKV, NW_WO, NW_W1, NW_W2 = 21, 48, 112, 0, 0
    b1 = NW_MOD; b2 = b1 + NW_QKV; b3 = b2 + NW_WO; b4 = b3 + NW_W1; b5 = b4 + NW_W2
    kernel_begin(name, b5)
    A("v_and_b32 v1, 7, v0")
    A("v_bfe_u32 v2, v0, 3, 1")
    A("v_lshrrev_b32 v3, 4, v0")
    A("s_waitcnt lgkmcnt(0)")
    A("s_cmp_lt_u32 s2, %d" % b1)
    A("s_cbranch_scc1 prep_mod")
    A("s_mov_b32 s60, 0x05040100")
    A("s_mov_b32 s61, 0x07060302")
    A("s_cmp_lt_u32 s2, %d" % b2)
    A("s_cbranch_scc1 prep_qkv")
    A("v_lshrrev_b32 v40, 6, v0")
    A("v_and_b32 v41, 63, v0")
    A("v_readfirstlane_b32 s40, v40")
    A("v_lshlrev_b32 v42, 4, v41")
    A("s_sub_u32 s72, s2, %d" % b2)
    A("s_lshl_b32 s72, s72, 3")
    A("s_add_u32 s72, s72, s40")
    A("s_lshl_b32 s92, s40, 12")
    PL = lambda s: "prep_%s" % s
    emit_rl_decode(PL, 72, 48, 41)
    emit_rl_body(48, 41, 42, 92, plain=True)
    stamp_flush()
    NST[0] = 0
    A("s_endpgm")
    def common(RS, nunits):
        A("s_mov_b32 s50, %d" % RS)
        A("s_mov_b32 s51, %d" % (2 * RS))
        A("s_mov_b32 s52, %d" % (3 * RS))
        if nunits < 512:
            A("v_cmp_gt_u32 vcc, %d, v0" % nunits)
            A("s_and_saveexec_b64 s[54:55], vcc")
            A("s_cbranch_execz %s_end" % name)
        for grp, vo in ((0, 4), (1, 5)):
            for i in range(4):
                so = "0" if i == 0 else "s%d" % (49 + i)
                A("buffer_load_dwordx2 %s, v%d, s[40:43], %s offen" % (vr(8 + 2 * (grp * 4 + i), 2), vo, so))
        A("v_lshlrev_b32 v6, 6, v0")
        A("s_waitcnt vmcnt(0)")
        for i in range(4):
            sel = "s61" if (i & 1) else "s60"
            for p in range(4):
                A("v_perm_b32 v%d, v%d, v%d, %s" % (24 + 4 * i + p, 8 + 2 * (2 * p + 1) + (i >> 1), 8 + 2 * (2 * p) + (i >> 1), sel))
        for i in range(4):
            A("ds_write_b128 v6, %s offset:%d" % (vr(24 + 4 * i, 4), 16 * i))
        A("v_and_b32 v7, 63, v0")
        A("v_lshrrev_b32 v6, 6, v0")
        A("v_lshlrev_b32 v6, 12, v6")
        A("v_lshl_add_u32 v6, v7, 4, v6")
        A("s_waitcnt lgkmcnt(0)")
        for i in range(4):
            A("ds_read_b128 %s, v6 offset:%d" % (vr(24 + 4 * i, 4), 1024 * i))
        for i in range(4):
            A("s_waitcnt lgkmcnt(%d)" % (3 - i))
            A("buffer_store_dwordx4 %s, v6, s[44:47], s48 offen offset:%d" % (vr(24 + 4 * i, 4), 1024 * i))
        n0 = NST[0]
        stamp_flush()
        NST[0] = n0
        A("s_endpgm")

    A.label("prep_qkv")
    RS = 2688
    A("s_sub_u32 s56, s2, %d" % b1)
    A("s_mul_i32 s57, s56, 171")
    A("s_lshr_b32 s57, s57, 9")
    A("s_mul_i32 s58, s57, 3")
    A("s_sub_u32 s58, s56, s58")
    A("s_mul_i32 s58, s58, 896")
    A("s_mul_i32 s57, s57, 56")
    A("s_add_u32 s58, s58, s57")
    srd(40, P_WQKV, 0, 448 * 1344 * 2)
    srd(44, P_WS, WQKV_OFF, WQKV_SZ)
    A("s_mul_i32 s48, s56, %d" % (28 * 1024))
    A("v_lshlrev_b32 v4, 4, v3")
    A("v_lshl_add_u32 v4, v2, 3, v4")
    A("s_mov_b32 s59, %d" % RS)
    A("v_mul_lo_u32 v4, v4, s59")
    A("v_lshl_add_u32 v4, v1, 3, v4")
    A("v_add_u32 v4, s58, v4")
    A("v_add_u32 v5, %d, v4" % (4 * RS))
    A("v_mov_b32 v7, 0x7f000000")
    A("v_cmp_eq_u32 vcc, 7, v1")
    A("s_nop 1")
    A("v_cndmask_b32 v4, v4, v7, vcc")
    A("v_cndmask_b32 v5, v5, v7, vcc")
    common(RS, 448)

    A.label("prep_mod")
    stamp()
    srd(40, P_WMOD, 0, 448 * 2688 * 2)
    srd(44, P_C, 0, 896)
    srd(48, P_WS, MOD_OFF, MOD_SZ)
    A("v_lshrrev_b32 v1, 6, v0")
    A("v_and_b32 v2, 63, v0")
    A("v_readfirstlane_b32 s56, v1")
    A("s_nop 3")
    A("s_mul_i32 s57, s56, 112")
    A("v_lshlrev_b32 v3, 1, v2")
    A("buffer_load_ushort v4, v3, s[44:47], s57 offen")
    A("s_lshl_b32 s58, s2, 8")
    A("v_lshlrev_b32 v5, 2, v2")
    A("v_add_u32 v5, s58, v5")
    A("s_mul_i32 s59, s56, %d" % (56 * 5376))
    for i in range(56):
        A("buffer_load_dword v%d, v5, s[40:43], s59 offen" % (16 + i))
        A("s_add_u32 s59, s59, 5376")
    stamp()
    A("s_waitcnt vmcnt(56)")
    stamp()
    A("v_lshlrev_b32 v4, 16, v4")
    A("v_mul_f32 v6, 0xbfb8aa3b, v4")
    A("v_exp_f32 v6, v6")
    A("s_nop 0")
    A("v_add_f32 v6, 1.0, v6")
    A("v_rcp_f32 v6, v6")
    A("s_nop 0")
    A("v_mul_f32 v6, v4, v6")
    A("v_mov_b32 v8, 0")
    A("v_mov_b32 v9, 0")
    for i in range(56):
        A("v_readlane_b32 s60, v6, %d" % i)
        A("s_waitcnt vmcnt(%d)" % (55 - i))
        A("v_lshlrev_b32 v10, 16, v%d" % (16 + i))
        A("v_and_b32 v11, 0xffff0000, v%d" % (16 + i))
        A("v_fmac_f32 v8, s60, v10")
        A("v_fmac_f32 v9, s60, v11")
    stamp()
    A("v_lshlrev_b32 v12, 3, v0")
    A("ds_write_b64 v12, v[8:9]")
    A("s_waitcnt lgkmcnt(0)")
    A("s_barrier")
    A("s_cmp_lg_u32 s56, 0")
    A("s_cbranch_scc1 %s_end" % name)
    for w in range(8):
        A("ds_read_b64 %s, v12 offset:%d" % (vr(16 + 2 * w, 2), 512 * w))
    A("s_waitcnt lgkmcnt(0)")
    for w in range(1, 8):
        A("v_add_f32 v16, v16, v%d" % (16 + 2 * w))
        A("v_add_f32 v17, v17, v%d" % (17 + 2 * w))
    A("s_lshl_b32 s58, s2, 7")
    A("v_lshlrev_b32 v3, 1, v2")
    A("v_add_u32 v3, s58, v3")
    A("v_subrev_u32 v10, 448, v3")
    A("v_cmp_gt_u32 vcc, 448, v10")
    A("s_nop 1")
    A("s_mov_b64 s[62:63], vcc")
    A("v_subrev_u32 v11, 1792, v3")
    A("v_cmp_gt_u32 vcc, 448, v11")
    A("s_nop 1")
    A("s_or_b64 vcc, vcc, s[62:63]")
    A("v_add_f32 v18, 1.0, v16")
    A("v_add_f32 v19, 1.0, v17")
    A("s_nop 1")
    A("v_cndmask_b32 v16, v16, v18, vcc")
    A("v_cndmask_b32 v17, v17, v19, vcc")
    A("v_lshlrev_b32 v3, 2, v3")
    A("buffer_store_dwordx2 v[16:17], v3, s[48:51], 0 offen")
    stamp_flush()
    kernel_end(name)
    kernel_desc(name, 96)
    return (name, b5, 512, 32768)


def emit_rl_decode(L, su, RL, lane):
    A("s_min_u32 s74, s%d, 895" % su)
    A("s_cmp_lt_u32 s74, 112")
    A("s_cbranch_scc1 %s" % L("rl_wo"))
    A("s_cmp_lt_u32 s74, 504")
    A("s_cbranch_scc1 %s" % L("rl_w1"))
    A("s_sub_u32 s74, s74, 504")
    A("s_mul_i32 s75, s74, 2341")
    A("s_lshr_b32 s75, s75, 16")
    A("s_mul_i32 s76, s75, 28")
    A("s_sub_u32 s76, s74, s76")
    srd(84, P_W2, 0, 1792 * 448 * 2)
    A("s_mov_b32 s77, 896")
    A("s_mov_b32 s78, 32")
    A("s_mov_b32 s79, 4")
    A("s_mul_i32 s80, s75, 112")
    A("s_mov_b32 s81, 0x%x" % W2_OFF)
    A("s_mov_b32 s82, 0")
    A("s_branch %s" % L("rl_go"))
    A.label(L("rl_w1"))
    A("s_sub_u32 s74, s74, 112")
    A("s_mul_i32 s75, s74, 9363")
    A("s_lshr_b32 s75, s75, 16")
    A("s_mul_i32 s76, s75, 7")
    A("s_sub_u32 s76, s74, s76")
    srd(84, P_W1, 0, 448 * 1792 * 2)
    A("s_mov_b32 s77, 3584")
    A("s_mov_b32 s78, 32")
    A("s_mov_b32 s79, 8")
    A("s_mul_i32 s80, s75, 28")
    A("s_mov_b32 s81, 0x%x" % W1_OFF)
    A("s_mov_b32 s82, 0")
    A("s_branch %s" % L("rl_go"))
    A.label(L("rl_wo"))
    A("s_lshr_b32 s75, s74, 3")
    A("s_and_b32 s76, s74, 7")
    srd(84, P_WO, 0, 448 * 448 * 2)
    A("s_mov_b32 s77, 896")
    A("s_mov_b32 s78, 28")
    A("s_mov_b32 s79, 4")
    A("s_lshl_b32 s80, s75, 5")
    A("s_mov_b32 s81, 0x%x" % WO_OFF)
    A("s_mov_b32 s82, 1")
    A.label(L("rl_go"))
    srd(88, P_WS, 0, W2_OFF + W2_SZ)
    A("s_cmp_ge_u32 s%d, 896" % su)
    A("s_cselect_b32 s86, 0, s86")
    A("s_cselect_b32 s90, 0, s90")
    A("s_lshl_b32 s83, s76, 2")
    A("s_add_u32 s80, s80, s83")
    A("s_lshl_b32 s80, s80, 10")
    A("s_add_u32 s81, s81, s80")
    A("v_and_b32 v%d, 7, v%d" % (RL, lane))
    A("v_bfe_u32 v%d, v%d, 3, 1" % (RL + 1, lane))
    A("v_lshrrev_b32 v%d, 4, v%d" % (RL + 2, lane))
    A("v_add_u32 v%d, s83, v%d" % (RL + 2, RL + 2))
    A("v_lshrrev_b32 v%d, 1, v%d" % (RL + 3, RL + 2))
    A("v_mul_lo_u32 v%d, v%d, s78" % (RL + 3, RL + 3))
    A("v_and_b32 v%d, 1, v%d" % (RL + 4, RL + 2))
    A("v_lshl_add_u32 v%d, v%d, 4, v%d" % (RL + 3, RL + 4, RL + 3))
    A("v_mul_lo_u32 v%d, v%d, s79" % (RL + 5, RL + 1))
    A("v_add_u32 v%d, v%d, v%d" % (RL + 3, RL + 3, RL + 5))
    A("v_mul_lo_u32 v%d, v%d, s77" % (RL + 3, RL + 3))
    A("v_lshl_add_u32 v%d, v%d, 3, v%d" % (RL + 3, RL, RL + 3))
    A("s_lshl_b32 s83, s75, 6")
    A("v_add_u32 v%d, s83, v%d" % (RL + 3, RL + 3))
    A("s_sub_u32 s83, 12, s79")
    A("s_mul_i32 s83, s83, s77")
    A("v_add_u32 v%d, s83, v%d" % (RL + 5, RL + 3))
    A("v_and_b32 v%d, v%d, v%d" % (RL + 4, RL + 4, RL + 1))
    A("v_and_b32 v%d, s82, v%d" % (RL + 4, RL + 4))
    A("v_mov_b32 v%d, 0x7f000000" % (RL + 6))
    A("v_cmp_eq_u32 vcc, 1, v%d" % (RL + 4))
    A("s_lshl_b32 s78, s77, 1")
    A("s_add_u32 s79, s78, s77")
    A("v_cndmask_b32 v%d, v%d, v%d, vcc" % (RL + 5, RL + 5, RL + 6))

def emit_rl_body(RL, lane, lane16, scratch_sreg, plain=False):
    for grp, vo in ((0, RL + 3), (1, RL + 5)):
        for i, so in enumerate(("0", "s77", "s78", "s79")):
            A("buffer_load_dwordx2 %s, v%d, s[84:87], %s offen" % (vr(RL + 8 + 2 * (grp * 4 + i), 2), vo, so))
    A("s_mov_b32 s74, 0x05040100")
    A("s_mov_b32 s75, 0x07060302")
    A("v_lshlrev_b32 v%d, 6, v%d" % (RL, lane))
    A("v_add_u32 v%d, s%d, v%d" % (RL, scratch_sreg, RL))
    A("v_add_u32 v%d, s%d, v%d" % (RL + 1, scratch_sreg, lane16))
    A("s_waitcnt vmcnt(0)")
    for i in range(4):
        sel = "s75" if (i & 1) else "s74"
        for p in range(4):
            A("v_perm_b32 v%d, v%d, v%d, %s" % (RL + 24 + 4 * i + p, RL + 8 + 2 * (2 * p + 1) + (i >> 1), RL + 8 + 2 * (2 * p) + (i >> 1), sel))
    for i in range(4):
        A("ds_write_b128 v%d, %s offset:%d" % (RL, vr(RL + 24 + 4 * i, 4), 16 * i))
    A("s_waitcnt lgkmcnt(0)")
    for i in range(4):
        A("ds_read_b128 %s, v%d offset:%d" % (vr(RL + 24 + 4 * i, 4), RL + 1, 1024 * i))
    for i in range(4):
        A("s_waitcnt lgkmcnt(%d)" % (3 - i))
        A("buffer_store_dwordx4 %s, v%d, s[88:91], s81 offen offset:%d%s" % (vr(RL + 24 + 4 * i, 4), lane16, 1024 * i, " #plain" if plain else ""))

def gen_lngemm(kind):
    name = "qkv_kernel" if kind == "qkv" else "mlp1_kernel"
    NCT = 6 if kind == "qkv" else 7
    MODL = 57344
    kernel_begin(name, 256)
    L = lambda s: "%s_%s" % (name, s)
    A("v_lshrrev_b32 v1, 6, v0")
    A("v_and_b32 v2, 63, v0")
    A("v_readfirstlane_b32 s40, v1")
    A("s_lshr_b32 s43, s2, 3")
    A("s_bfe_u32 s41, s2, 0x20001")
    A("s_lshl_b32 s41, s41, 3")
    A("s_and_b32 s42, s43, 7")
    A("s_add_u32 s41, s41, s42")
    A("s_and_b32 s42, s2, 1")
    A("s_lshl_b32 s42, s42, 2")
    A("s_lshr_b32 s43, s43, 3")
    A("s_add_u32 s42, s42, s43")
    A("v_and_b32 v3, 7, v2")
    A("v_lshrrev_b32 v4, 3, v2")
    A("s_waitcnt lgkmcnt(0)")
    stamp()
    if kind == "qkv":
        srd(44, P_X, 0, X_SZ)
        srd(48, P_WS, MOD_OFF, 3584)
        srd(52, P_WS, WQKV_OFF, WQKV_SZ)
    else:
        srd(44, P_WS, X2_OFF, X_SZ)
        srd(48, P_WS, MOD_OFF + 1344 * 4, 3584)
        srd(52, P_WS, W1_OFF, W1_SZ)
    A("s_lshl_b32 s60, s41, 6")
    A("s_lshl_b32 s61, s40, 3")
    A("s_add_u32 s60, s60, s61")
    A("v_add_u32 v5, s60, v3")
    A("v_mul_u32_u24 v5, 896, v5")
    A("v_lshl_add_u32 v5, v4, 4, v5")
    XR = 8
    for i in range(7):
        A("buffer_load_dwordx4 %s, v5, s[44:47], 0 offen offset:%d" % (vr(XR + 4 * i, 4), 128 * i))
        if os.environ.get("LAT") and i == 0:
            stamp()
            A("s_waitcnt vmcnt(0)")
            stamp()
    if os.environ.get("LAT"):
        stamp()
        A("s_waitcnt vmcnt(0)")
        stamp()
    A("v_lshlrev_b32 v6, 4, v0")
    A("buffer_load_dwordx4 v[36:39], v6, s[48:51], 0 offen")
    WR = 128
    A("v_lshlrev_b32 v7, 4, v2")
    A("s_mul_i32 s62, s42, %d" % NCT)
    A("s_add_u32 s62, s62, s40")
    A("s_mul_i32 s63, s62, %d" % (28 * 1024))
    A("s_lshr_b32 s60, s40, 2")
    A("s_mul_i32 s60, s60, 28672")
    A("s_and_b32 s61, s40, 3")
    A("s_lshl_b32 s61, s61, 7")
    A("s_add_u32 s60, s60, s61")
    A("s_barrier")
    XF = 40
    def ln_phase(withw):
        NPRE = int(os.environ.get("NPRE", "8"))
        wl = []
        for k in range(28):
            wl.append("buffer_load_dwordx4 %s, v7, s[52:55], s63 offen offset:%d" % (vr(WR + 4 * k, 4), 1024 * (k & 3)))
            if (k & 3) == 3:
                wl[-1] += "\ns_add_u32 s63, s63, 4096"
        if not withw: wl = []
        for k in range(min(NPRE, len(wl))):
            A(wl.pop(0))
        A("s_waitcnt vmcnt(%d)" % (NPRE if withw else 0))
        stamp()
        cnt = [0]
        def V(t):
            A(t)
            cnt[0] += 1
            if wl and cnt[0] % int(os.environ.get("PER", "18")) == 0:
                A(wl.pop(0))
        V("v_add_u32 v6, %d, v6" % MODL)
        V("ds_write_b128 v6, v[36:39]")
        for r in range(28):
            V("v_lshlrev_b32 v%d, 16, v%d" % (XF + 2 * r, XR + r))
            V("v_and_b32 v%d, 0xffff0000, v%d" % (XF + 2 * r + 1, XR + r))
        pr = lambda r: vr(r, 2)
        V("v_pk_add_f32 v[96:97], %s, %s" % (pr(XF), pr(XF + 2)))
        V("v_pk_add_f32 v[98:99], %s, %s" % (pr(XF + 4), pr(XF + 6)))
        for e in range(4, 28):
            a = 96 + 2 * (e & 1)
            V("v_pk_add_f32 %s, %s, %s" % (pr(a), pr(a), pr(XF + 2 * e)))
        V("v_pk_add_f32 v[96:97], v[96:97], v[98:99]")
        V("v_add_f32 v96, v96, v97")
        def xreduce(r, t1, t2):
            V("s_nop 1")
            V("v_add_f32_dpp v%d, v%d, v%d row_ror:8 row_mask:0xf bank_mask:0xf" % (t1, r, r))
            V("v_mov_b32 v%d, v%d" % (t2, t1))
            V("s_nop 1")
            V("v_permlane16_swap_b32 v%d, v%d" % (t1, t2))
            V("s_nop 1")
            V("v_add_f32 v%d, v%d, v%d" % (t1, t1, t2))
            V("v_mov_b32 v%d, v%d" % (t2, t1))
            V("s_nop 1")
            V("v_permlane32_swap_b32 v%d, v%d" % (t1, t2))
            V("s_nop 1")
            V("v_add_f32 v%d, v%d, v%d" % (r, t1, t2))
        xreduce(96, 100, 101)
        V("v_mul_f32 v96, 0x%08x, v96" % f2u(-1.0 / 448))
        V("v_mov_b32 v97, v96")
        for e in range(28):
            V("v_pk_add_f32 %s, %s, v[96:97]" % (pr(XF + 2 * e), pr(XF + 2 * e)))
        V("v_pk_mul_f32 v[98:99], %s, %s" % (pr(XF), pr(XF)))
        V("v_pk_mul_f32 v[100:101], %s, %s" % (pr(XF + 2), pr(XF + 2)))
        for e in range(2, 28):
            a = 98 + 2 * (e & 1)
            V("v_pk_fma_f32 %s, %s, %s, %s" % (pr(a), pr(XF + 2 * e), pr(XF + 2 * e), pr(a)))
        V("v_pk_add_f32 v[98:99], v[98:99], v[100:101]")
        V("v_add_f32 v97, v98, v99")
        xreduce(97, 100, 101)
        V("v_mov_b32 v98, 0x%08x" % f2u(1e-5))
        V("v_fmac_f32 v98, 0x%08x, v97" % f2u(1.0 / 448))
        V("v_rsq_f32 v98, v98")
        V("v_lshlrev_b32 v5, 5, v4")
        V("v_add_u32 v5, %d, v5" % MODL)
        V("v_lshrrev_b32 v6, 1, v4")
        V("v_lshlrev_b32 v6, 10, v6")
        V("v_and_b32 v36, 1, v4")
        V("v_lshl_add_u32 v6, v36, 9, v6")
        V("v_lshl_add_u32 v6, v3, 4, v6")
        V("v_add_u32 v6, s60, v6")
        V("v_mov_b32 v99, v98")
        A("s_waitcnt lgkmcnt(0)")
        stamp()
        A("s_barrier")
        stamp()
        def rdmod(i):
            b = 8 + 16 * (i & 1)
            V("ds_read_b128 %s, v5 offset:%d" % (vr(b, 4), 256 * i))
            V("ds_read_b128 %s, v5 offset:%d" % (vr(b + 4, 4), 256 * i + 16))
            V("ds_read_b128 %s, v5 offset:%d" % (vr(b + 8, 4), 1792 + 256 * i))
            V("ds_read_b128 %s, v5 offset:%d" % (vr(b + 12, 4), 1792 + 256 * i + 16))
        rdmod(0)
        for i in range(7):
            b = 8 + 16 * (i & 1)
            for j in range(4):
                V("v_pk_mul_f32 %s, %s, v[98:99]" % (pr(XF + 8 * i + 2 * j), pr(XF + 8 * i + 2 * j)))
            if i + 1 < 7:
                A("s_waitcnt lgkmcnt(1)" if i > 0 else "s_waitcnt lgkmcnt(0)")
                rdmod(i + 1)
            else:
                A("s_waitcnt lgkmcnt(0)")
            for j in range(4):
                V("v_pk_fma_f32 %s, %s, %s, %s" % (pr(XF + 8 * i + 2 * j), pr(XF + 8 * i + 2 * j), pr(b + 8 + 2 * j), pr(b + 2 * j)))
            hb = 100 + 4 * (i & 1)
            for p in range(4):
                V("v_cvt_pk_bf16_f32 v%d, v%d, v%d" % (hb + p, XF + 8 * i + 2 * p, XF + 8 * i + 2 * p + 1))
            V("ds_write_b128 v6, %s offset:%d" % (vr(hb, 4), 4096 * i))
        while wl: A(wl.pop(0))
        A("s_waitcnt lgkmcnt(0)")
        stamp()
        A("s_barrier")
        stamp()
    A("s_cmp_ge_u32 s40, %d" % NCT)
    A("s_cbranch_scc1 %s" % L("now"))
    n0 = NST[0]
    ln_phase(True)
    A("s_branch %s" % L("gemm"))
    A.label(L("now"))
    n1 = NST[0]; NST[0] = n0
    ln_phase(False)
    if kind == "qkv" and os.environ.get("SIDE", "0") == "1":
        A("s_lshl_b32 s72, s2, 1")
        A("s_add_u32 s72, s72, s40")
        A("s_sub_u32 s72, s72, 6")
        A("s_lshl_b32 s92, s40, 12")
        A("s_add_u32 s92, s92, %d" % (57344 + 8192 - 6 * 4096))
        A.label(L("side"))
        emit_rl_decode(L, 72, 192, 2)
        emit_rl_body(192, 2, 7, 92, plain=(os.environ.get("SIDE_PLAIN", "0") == "1"))
        A("s_add_u32 s72, s72, 512")
        A("s_cmp_lt_u32 s72, 896")
        A("s_cbranch_scc1 %s" % L("side"))
    A("s_endpgm")
    A.label(L("gemm"))
    ACC = 8
    HB = 40
    def gemm(transposed):
        NPF = 3
        def rd(s):
            b = HB + 8 * (s % 4)
            A("ds_read_b128 %s, v7 offset:%d" % (vr(b, 4), s * 1024))
            A("ds_read_b128 %s, v7 offset:%d" % (vr(b + 4, 4), 28672 + s * 1024))
        for s in range(NPF):
            rd(s)
        for s in range(28):
            if s + NPF < 28:
                rd(s + NPF)
                A("s_waitcnt lgkmcnt(%d)" % (2 * NPF))
            else:
                A("s_waitcnt lgkmcnt(%d)" % (2 * (27 - s)))
            b = HB + 8 * (s % 4)
            A("s_waitcnt vmcnt(%d)" % (27 - s))
            for T in range(2):
                c = "0" if s == 0 else vr(ACC + 16 * T, 16)
                w = vr(WR + 4 * s, 4); h = vr(b + 4 * T, 4)
                if transposed:
                    A("v_mfma_f32_32x32x16_bf16 %s, %s, %s, %s" % (vr(ACC + 16 * T, 16), w, h, c))
                else:
                    A("v_mfma_f32_32x32x16_bf16 %s, %s, %s, %s" % (vr(ACC + 16 * T, 16), h, w, c))
        nops(16)
    def pack_store(T, srdreg, soff):
        for p in range(8):
            A("v_cvt_pk_bf16_f32 v%d, v%d, v%d" % (72 + p, ACC + 16 * T + 2 * p, ACC + 16 * T + 2 * p + 1))
        A("buffer_store_dwordx4 v[72:75], v7, s[%d:%d], %s offen" % (srdreg, srdreg + 3, soff))
        A("buffer_store_dwordx4 v[76:79], v7, s[%d:%d], %s offen offset:1024" % (srdreg, srdreg + 3, soff))
        A("s_nop 1")
    if kind == "qkv":
        srd(56, P_WS, Q_OFF, 3 * QKV_SZ)
        A("s_lshl_b32 s64, s42, 1")
        A("s_cmp_ge_u32 s40, 3")
        A("s_cselect_b32 s65, 1, 0")
        A("s_add_u32 s64, s64, s65")
        A("s_mul_i32 s65, s65, 3")
        A("s_sub_u32 s65, s40, s65")
        A("s_mul_i32 s66, s65, 0x%x" % QKV_SZ)
        A("s_lshl_b32 s67, s64, 17")
        A("s_add_u32 s66, s66, s67")
        A("s_lshl_b32 s67, s41, 12")
        A("s_add_u32 s66, s66, s67")
        A("s_add_u32 s67, s66, 2048")
        A("s_cmp_eq_u32 s65, 2")
        A("s_cbranch_scc1 %s" % L("v"))
        gemm(True)
        stamp()
        A("s_cmp_eq_u32 s65, 1")
        A("s_cbranch_scc1 %s" % L("kst"))
        import math
        A("s_mov_b32 s68, 0x%08x" % f2u(math.log2(math.e) / math.sqrt(28.0)))
        for r in range(32):
            A("v_mul_f32 v%d, s68, v%d" % (ACC + r, ACC + r))
        A.label(L("kst"))
        pack_store(0, 56, "s66")
        pack_store(1, 56, "s67")
        n0 = NST[0]
        stamp_flush()
        A("s_endpgm")
        NST[0] = n0
        A.label(L("v"))
        gemm(False)
        stamp()
        A("v_and_b32 v80, 31, v2")
        A("v_cmp_eq_u32 vcc, 28, v80")
        A("v_mov_b32 v81, 1.0")
        A("s_nop 1")
        for r in range(32):
            A("v_cndmask_b32 v%d, v%d, v81, vcc" % (ACC + r, ACC + r))
        pack_store(0, 56, "s66")
        pack_store(1, 56, "s67")
    else:
        srd(56, P_WS, H1_OFF, H1_SZ)
        gemm(True)
        stamp()
        for r in range(32):
            A("v_mul_f32 v%d, 0xbfb8aa3b, v%d" % (80 + r, ACC + r))
        for r in range(32):
            A("v_exp_f32 v%d, v%d" % (80 + r, 80 + r))
        for r in range(32):
            A("v_add_f32 v%d, 1.0, v%d" % (80 + r, 80 + r))
        for r in range(32):
            A("v_rcp_f32 v%d, v%d" % (80 + r, 80 + r))
        for r in range(32):
            A("v_mul_f32 v%d, v%d, v%d" % (ACC + r, ACC + r, 80 + r))
        A("s_lshl_b32 s66, s41, 1")
        A("s_mul_i32 s66, s66, %d" % (112 * 1024))
        A("s_lshl_b32 s67, s62, 11")
        A("s_add_u32 s66, s66, s67")
        A("s_add_u32 s67, s66, %d" % (112 * 1024))
        pack_store(0, 56, "s66")
        pack_store(1, 56, "s67")
    stamp_flush()
    kernel_end(name)
    kernel_desc(name, 240)
    return (name, 256, 512, 57344 + 8192 + 8192)

import struct
def f2u(f):
    return struct.unpack("<I", struct.pack("<f", f))[0]

def gen_attn():
    name = "attn_kernel"
    kernel_begin(name, 256)
    L = lambda s: "%s_%s" % (name, s)
    FLAG = 131072
    A("v_lshrrev_b32 v1, 6, v0")
    A("v_and_b32 v2, 63, v0")
    A("v_readfirstlane_b32 s40, v1")
    A("s_and_b32 s41, s2, 15")
    A("s_lshr_b32 s42, s2, 4")
    A("v_lshlrev_b32 v3, 4, v2")
    A("v_mov_b32 v4, %d" % FLAG)
    A("v_mov_b32 v5, 0")
    A("ds_write_b32 v4, v5")
    A("s_waitcnt lgkmcnt(0)")
    srd(44, P_WS, Q_OFF, QKV_SZ)
    srd(48, P_WS, K_OFF, QKV_SZ)
    srd(52, P_WS, V_OFF, QKV_SZ)
    srd(56, P_WS, O_OFF, O_SZ)
    A("s_lshl_b32 s60, s42, 2")
    A("s_add_u32 s60, s60, s40")
    A("s_lshl_b32 s61, s41, 6")
    A("s_add_u32 s61, s61, s60")
    A("s_lshl_b32 s61, s61, 11")
    QF = 8
    A("buffer_load_dwordx4 %s, v3, s[44:47], s61 offen" % vr(QF, 4))
    A("buffer_load_dwordx4 %s, v3, s[44:47], s61 offen offset:1024" % vr(QF + 4, 4))
    A("s_lshl_b32 s63, s40, 11")
    def dma_init():
        A("s_lshl_b32 s62, s41, 17")
        A("s_add_u32 s62, s62, s63")
        A("s_mov_b32 s64, 0")
    def dma():
        A("s_add_u32 s65, s64, s63")
        A("s_mov_b32 m0, s65")
        A("s_add_u32 s65, s65, 8192")
        A("buffer_load_dwordx4 v3, s[48:51], s62 offen lds")
        A("buffer_load_dwordx4 v3, s[48:51], s62 offen offset:1024 lds")
        A("s_mov_b32 m0, s65")
        A("s_add_u32 s64, s64, 16384")
        A("buffer_load_dwordx4 v3, s[52:55], s62 offen lds")
        A("buffer_load_dwordx4 v3, s[52:55], s62 offen offset:1024 lds")
        A("s_add_u32 s62, s62, 8192")
        A("s_and_b32 s64, s64, 0xffff")
    O = 16
    S = [32, 48]; P = [64, 72]; KF = [80, 88]; VF = [96, 104]; NM = 112
    VC, VN = 4, 5
    def mfma(d, a, b, c):
        A("v_mfma_f32_32x32x16_bf16 %s, %s, %s, %s" % (vr(d, 16), vr(a, 4), vr(b, 4), c if isinstance(c, str) else vr(c, 16)))
    CH = int(os.environ.get("ATT_CH", "8"))
    NCH = 64 // CH
    CB = CH * 2048
    NSL = 4
    SLB = 2 * CB
    PW = CB // 4 // 1024
    vmq = ["q", "q"]
    def VM(l, tag):
        A(l); vmq.append(tag)
    def vmwait(tag, extra=""):
        idx = max(i for i, t in enumerate(vmq) if t == tag)
        A("s_waitcnt vmcnt(%d) %s" % (len(vmq) - 1 - idx, extra))
    A("s_mul_i32 s69, s40, %d" % (CB // 4))
    A("s_lshl_b32 s70, s41, 17")
    A("s_add_u32 s70, s70, s69")
    def fdma(c):
        out = []
        slot = (c % NSL) * SLB
        for op, sr_ in ((0, 48), (1, 52)):
            for p in range(PW):
                if p % 4 == 0:
                    out.append(("s_add_u32 s71, s69, %d" % (slot + op * CB + p * 1024), None))
                    out.append(("s_mov_b32 m0, s71", None))
                    out.append(("s_add_u32 s72, s70, %d" % (c * CB + p * 1024), None))
                out.append(("buffer_load_dwordx4 v3, s[%d:%d], s72 offen offset:%d lds" % (sr_, sr_ + 3, 1024 * (p % 4)), "c%d" % c))
        return out
    pend = []
    def drip(n):
        k = 0
        while pend and k < n:
            l, tag = pend.pop(0)
            if tag: VM(l, tag); k += 1
            else: A(l)
    pend += fdma(0); drip(1000)
    pend += fdma(1) + fdma(2)
    for r in range(16):
        A("v_mov_b32 v%d, 0" % (O + r))
    for r in range(8):
        A("v_mov_b32 v%d, 0" % (P[1] + r))
        A("v_mov_b32 v%d, 0" % (VF[1] + r))
    A("v_add_u32 v4, 0x10000, v3")
    def lds(dst, addr):
        if addr >= 65536:
            A("ds_read_b128 %s, v4 offset:%d" % (vr(dst, 4), addr - 65536))
        else:
            A("ds_read_b128 %s, v3 offset:%d" % (vr(dst, 4), addr))
    def kaddr(i): return ((i // CH) % NSL) * SLB + (i % CH) * 2048
    def vaddr(i): return ((i // CH) % NSL) * SLB + CB + (i % CH) * 2048
    stamp()
    vmwait("c0")
    A("s_barrier")
    stamp()
    drip(2 * PW)
    lds(KF[0], kaddr(0)); lds(KF[0] + 4, kaddr(0) + 1024)
    lds(KF[1], kaddr(1)); lds(KF[1] + 4, kaddr(1) + 1024)
    A("s_waitcnt lgkmcnt(2)")
    mfma(S[0], KF[0], QF, "0")
    mfma(S[0], KF[0] + 4, QF + 4, S[0])
    nops(16)
    s0 = S[0]
    A("v_max3_f32 v6, v%d, v%d, v%d" % (s0, s0 + 1, s0 + 2))
    for r in range(3, 15, 2):
        A("v_max3_f32 v6, v6, v%d, v%d" % (s0 + r, s0 + r + 1))
    A("v_max_f32 v6, v6, v%d" % (s0 + 15))
    A("v_mov_b32 v7, v6")
    A("s_nop 1")
    A("v_permlane32_swap_b32 v6, v7")
    A("s_nop 1")
    A("v_max_f32 v6, v6, v7")
    for r in range(16):
        A("v_sub_f32 v%d, 0, v6" % (NM + r))
    for r in range(16):
        A("v_sub_f32 v%d, v%d, v6" % (s0 + r, s0 + r))
    stamp()
    for i in range(64):
        c, t = i // CH, i % CH
        b = i & 1
        sc, sn = S[b], S[b ^ 1]
        pc, pp = P[b], P[b ^ 1]
        kn = KF[b ^ 1]; kl = KF[b]; vl = VF[b]; vp = VF[b ^ 1]
        if t == CH - 2 and c + 1 < NCH:
            assert not pend
            vmwait("c%d" % (c + 1), "lgkmcnt(0)")
            A("s_barrier")
            if c + 3 < NCH:
                pend += fdma(c + 3)
        else:
            A("s_waitcnt lgkmcnt(0)")
        def expcvt(q):
            for r in range(4 * q, 4 * q + 4):
                A("v_exp_f32 v%d, v%d" % (sc + r, sc + r))
            A("v_cvt_pk_bf16_f32 v%d, v%d, v%d" % (pc + 2 * q, sc + 4 * q, sc + 4 * q + 1))
            A("v_cvt_pk_bf16_f32 v%d, v%d, v%d" % (pc + 2 * q + 1, sc + 4 * q + 2, sc + 4 * q + 3))
        if i + 1 < 64: mfma(sn, kn, QF, NM)
        if i + 2 < 64:
            lds(kl, kaddr(i + 2)); lds(kl + 4, kaddr(i + 2) + 1024)
        expcvt(0)
        if i > 0: mfma(O, vp, pp, O)
        lds(vl, vaddr(i)); lds(vl + 4, vaddr(i) + 1024)
        drip(1)
        expcvt(1)
        if i + 1 < 64: mfma(sn, kn + 4, QF + 4, sn)
        drip(1)
        expcvt(2)
        if i > 0: mfma(O, vp + 4, pp + 4, O)
        expcvt(3)
    assert not pend
    stamp()
    A("s_waitcnt lgkmcnt(0)")
    mfma(O, VF[1], P[1], O)
    mfma(O, VF[1] + 4, P[1] + 4, O)
    nops(16)
    A("v_mov_b32 v6, v%d" % (O + 12))
    A("v_mov_b32 v7, v%d" % (O + 12))
    A("s_nop 1")
    A("v_permlane32_swap_b32 v6, v7")
    A("v_and_b32 v6, 0x7fffffff, v%d" % O)
    for r in range(1, 16):
        A("v_add_f32 v6, v6, abs(v%d)" % (O + r))
    A("v_add_f32 v6, v6, v7")
    A("v_mov_b32 v1, 0x7b800000")
    A("v_cmp_nlt_f32 vcc, v6, v1")
    A("s_nop 3")
    A("s_cmp_eq_u64 vcc, 0")
    A("s_cbranch_scc1 %s" % L("ok"))
    A("v_mov_b32 v4, %d" % FLAG)
    A("v_mov_b32 v5, 1")
    A("ds_write_b32 v4, v5")
    A.label(L("ok"))
    A("v_mov_b32 v4, %d" % FLAG)
    A("s_waitcnt lgkmcnt(0)")
    A("s_barrier")
    A("ds_read_b32 v5, v4")
    A("s_waitcnt lgkmcnt(0)")
    A("v_readfirstlane_b32 s68, v5")
    A("s_nop 3")
    A("s_cmp_eq_u32 s68, 0")
    A("s_cbranch_scc1 %s" % L("epi"))
    stamp()
    A("s_barrier")
    dma_init()
    dma(); dma(); dma()
    S0 = 32; KF0 = 48; VF0 = 56; P0 = 64
    for r in range(16):
        A("v_mov_b32 v%d, 0" % (O + r))
    A("v_mov_b32 v72, 0xff800000")
    A("s_mov_b32 s66, 0")
    A("s_mov_b32 s67, 0")
    A.label(L("loop"))
    A("s_cmp_ge_u32 s66, 13")
    A("s_cbranch_scc1 %s" % L("w0"))
    A("s_waitcnt vmcnt(8)")
    A("s_barrier")
    dma()
    A("s_branch %s" % L("go"))
    A.label(L("w0"))
    A("s_waitcnt vmcnt(0)")
    A("s_barrier")
    A.label(L("go"))
    A("v_add_u32 v4, s67, v3")
    for t in range(4):
        A("ds_read_b128 %s, v4 offset:%d" % (vr(KF0, 4), 2048 * t))
        A("ds_read_b128 %s, v4 offset:%d" % (vr(KF0 + 4, 4), 2048 * t + 1024))
        A("ds_read_b128 %s, v4 offset:%d" % (vr(VF0, 4), 8192 + 2048 * t))
        A("ds_read_b128 %s, v4 offset:%d" % (vr(VF0 + 4, 4), 8192 + 2048 * t + 1024))
        A("s_waitcnt lgkmcnt(2)")
        mfma(S0, KF0, QF, "0")
        mfma(S0, KF0 + 4, QF + 4, S0)
        nops(16)
        A("v_max3_f32 v73, v%d, v%d, v%d" % (S0, S0 + 1, S0 + 2))
        for r in range(3, 15, 2):
            A("v_max3_f32 v73, v73, v%d, v%d" % (S0 + r, S0 + r + 1))
        A("v_max_f32 v73, v73, v%d" % (S0 + 15))
        A("v_mov_b32 v74, v73")
        A("s_nop 1")
        A("v_permlane32_swap_b32 v73, v74")
        A("s_nop 1")
        A("v_max3_f32 v73, v73, v74, v72")
        A("v_sub_f32 v74, v72, v73")
        A("v_exp_f32 v74, v74")
        A("v_mov_b32 v72, v73")
        for r in range(16):
            A("v_sub_f32 v%d, v%d, v73" % (S0 + r, S0 + r))
        for r in range(16):
            A("v_exp_f32 v%d, v%d" % (S0 + r, S0 + r))
        for r in range(16):
            A("v_mul_f32 v%d, v%d, v74" % (O + r, O + r))
        for p in range(8):
            A("v_cvt_pk_bf16_f32 v%d, v%d, v%d" % (P0 + p, S0 + 2 * p, S0 + 2 * p + 1))
        A("s_waitcnt lgkmcnt(0)")
        A("s_nop 1")
        mfma(O, VF0, P0, O)
        mfma(O, VF0 + 4, P0 + 4, O)
        nops(16)
    A("s_add_u32 s67, s67, 16384")
    A("s_and_b32 s67, s67, 0xffff")
    A("s_add_u32 s66, s66, 1")
    A("s_cmp_lt_u32 s66, 16")
    A("s_cbranch_scc1 %s" % L("loop"))
    A("v_mov_b32 v6, v%d" % (O + 12))
    A("v_mov_b32 v7, v%d" % (O + 12))
    A("s_nop 1")
    A("v_permlane32_swap_b32 v6, v7")
    A.label(L("epi"))
    A("s_nop 1")
    A("v_rcp_f32 v7, v7")
    A("s_nop 0")
    for r in range(16):
        A("v_mul_f32 v%d, v%d, v7" % (O + r, O + r))
    for p in range(8):
        A("v_cvt_pk_bf16_f32 v%d, v%d, v%d" % (64 + p, O + 2 * p, O + 2 * p + 1))
    A("s_lshl_b32 s60, s60, 5")
    A("s_lshl_b32 s61, s41, 1")
    A("s_add_u32 s60, s60, s61")
    A("s_lshl_b32 s60, s60, 10")
    A("buffer_store_dwordx4 %s, v3, s[56:59], s60 offen" % vr(64, 4))
    A("buffer_store_dwordx4 %s, v3, s[56:59], s60 offen offset:1024" % vr(68, 4))
    stamp_flush()
    kernel_end(name)
    kernel_desc(name, 128)
    return (name, 256, 256, 131072 + 64)

def gen_skgemm(kind):
    name = "wo_kernel" if kind == "wo" else "mlp2_kernel"
    KS = 32 if kind == "wo" else 112
    KW = KS // 8
    kernel_begin(name, 224)
    A("v_lshrrev_b32 v1, 6, v0")
    A("v_and_b32 v2, 63, v0")
    A("v_readfirstlane_b32 s40, v1")
    A("s_and_b32 s41, s2, 31")
    A("s_lshr_b32 s42, s2, 5")
    A("v_lshlrev_b32 v3, 4, v2")
    A("s_waitcnt lgkmcnt(0)")
    if kind == "wo":
        srd(44, P_WS, O_OFF, O_SZ)
        srd(48, P_WS, WO_OFF, WO_SZ)
        srd(52, P_X, 0, X_SZ)
        srd(56, P_WS, MOD_OFF + 896 * 4, 1792)
        srd(60, P_WS, X2_OFF, X_SZ)
    else:
        srd(44, P_WS, H1_OFF, H1_SZ)
        srd(48, P_WS, W2_OFF, W2_SZ)
        srd(52, P_WS, X2_OFF, X_SZ)
        srd(56, P_WS, MOD_OFF + 2240 * 4, 1792)
        srd(60, P_OUT, 0, X_SZ)
    A("s_mul_i32 s64, s40, %d" % (KW * 1024))
    A("s_mul_i32 s65, s41, %d" % (2 * KS * 1024))
    A("s_add_u32 s65, s65, s64")
    A("s_add_u32 s66, s65, %d" % (KS * 1024))
    A("s_mul_i32 s67, s42, %d" % (2 * KS * 1024))
    A("s_add_u32 s67, s67, s64")
    A("s_add_u32 s68, s67, %d" % (KS * 1024))
    NB = min(KW, 8)
    FB = 80
    ACC = 8
    def ld(s):
        b = FB + 16 * (s % NB)
        A("buffer_load_dwordx4 %s, v3, s[44:47], s65 offen offset:%d" % (vr(b, 4), 1024 * (s & 3)))
        A("buffer_load_dwordx4 %s, v3, s[44:47], s66 offen offset:%d" % (vr(b + 4, 4), 1024 * (s & 3)))
        A("buffer_load_dwordx4 %s, v3, s[48:51], s67 offen offset:%d" % (vr(b + 8, 4), 1024 * (s & 3)))
        A("buffer_load_dwordx4 %s, v3, s[48:51], s68 offen offset:%d" % (vr(b + 12, 4), 1024 * (s & 3)))
        if (s & 3) == 3:
            for r in (65, 66, 67, 68):
                A("s_add_u32 s%d, s%d, 4096" % (r, r))
    for s in range(NB):
        ld(s)
    issued = NB
    for s in range(KW):
        A("s_waitcnt vmcnt(%d)" % (4 * (issued - s - 1)))
        b = FB + 16 * (s % NB)
        for T in range(2):
            for C in range(2):
                acc = vr(ACC + 16 * (2 * T + C), 16)
                c = "0" if s == 0 else acc
                A("v_mfma_f32_32x32x16_bf16 %s, %s, %s, %s" % (acc, vr(b + 8 + 4 * C, 4), vr(b + 4 * T, 4), c))
        if issued < KW:
            ld(issued)
            issued += 1
    nops(16)
    A("v_and_b32 v4, 31, v2")
    A("v_mul_u32_u24 v4, 272, v4")
    A("v_lshrrev_b32 v5, 5, v2")
    A("v_lshl_add_u32 v4, v5, 4, v4")
    A("s_mul_i32 s69, s40, %d" % (64 * 272))
    A("v_add_u32 v4, s69, v4")
    for T in range(2):
        for C in range(2):
            for q in range(4):
                A("ds_write_b128 v4, %s offset:%d" % (vr(ACC + 16 * (2 * T + C) + 4 * q, 4), T * 32 * 272 + C * 128 + q * 32))
    A("v_lshrrev_b32 v5, 3, v0")
    A("v_and_b32 v6, 7, v0")
    A("s_lshl_b32 s69, s41, 6")
    A("v_add_u32 v7, s69, v5")
    A("v_mul_u32_u24 v7, 896, v7")
    A("v_lshl_add_u32 v7, v6, 4, v7")
    A("s_lshl_b32 s70, s42, 7")
    A("buffer_load_dwordx4 v[72:75], v7, s[52:55], s70 offen")
    A("v_lshlrev_b32 v76, 5, v6")
    A("s_lshl_b32 s71, s42, 8")
    A("buffer_load_dwordx4 v[80:83], v76, s[56:59], s71 offen")
    A("buffer_load_dwordx4 v[84:87], v76, s[56:59], s71 offen offset:16")
    A("v_mul_u32_u24 v4, 272, v5")
    A("v_lshl_add_u32 v4, v6, 5, v4")
    A("s_waitcnt lgkmcnt(0)")
    A("s_barrier")
    for w in range(8):
        if w * 64 * 272 + 16 < 65536 - 16:
            A("ds_read_b128 %s, v4 offset:%d" % (vr(88 + 8 * w, 4), w * 64 * 272))
            A("ds_read_b128 %s, v4 offset:%d" % (vr(92 + 8 * w, 4), w * 64 * 272 + 16))
        else:
            if w == 4:
                A("v_add_u32 v4, %d, v4" % (4 * 64 * 272))
            A("ds_read_b128 %s, v4 offset:%d" % (vr(88 + 8 * w, 4), (w - 4) * 64 * 272))
            A("ds_read_b128 %s, v4 offset:%d" % (vr(92 + 8 * w, 4), (w - 4) * 64 * 272 + 16))
    A("s_waitcnt lgkmcnt(0)")
    for w in range(1, 8):
        for j in range(8):
            A("v_add_f32 v%d, v%d, v%d" % (88 + j, 88 + j, 88 + 8 * w + j))
    A("s_waitcnt vmcnt(0)")
    for p in range(4):
        A("v_lshlrev_b32 v%d, 16, v%d" % (100 + 2 * p, 72 + p))
        A("v_and_b32 v%d, 0xffff0000, v%d" % (101 + 2 * p, 72 + p))
    for j in range(8):
        A("v_fmac_f32 v%d, v%d, v%d" % (100 + j, 88 + j, 80 + j))
    for p in range(4):
        A("v_cvt_pk_bf16_f32 v%d, v%d, v%d" % (108 + p, 100 + 2 * p, 101 + 2 * p))
    A("buffer_store_dwordx4 v[108:111], v7, s[60:63], s70 offen")
    stamp_flush()
    kernel_end(name)
    kernel_desc(name, max(FB + 16 * NB, 160))
    return (name, 224, 512, 8 * 64 * 272)

def main():
    launches = []
    launches.append(gen_prep())
    launches.append(gen_lngemm("qkv"))
    launches.append(gen_attn())
    launches.append(gen_skgemm("wo"))
    launches.append(gen_lngemm("mlp1"))
    launches.append(gen_skgemm("mlp2"))
    hdr = open("cdna_kernels/%s.s.ref" % NAME).read().split("\n")
    out = []
    for l in hdr:
        if l.startswith("; @launch") or l.startswith("; Override"):
            continue
        if not l.startswith(";"):
            break
        out.append(l)
    only = sys.argv[2] if len(sys.argv) > 2 else None
    for (n, g, b, lds) in launches:
        out.append("; @launch kernel=%s grid=(%d,1,1) block=(%d,1,1) lds=%d" % (n, g, b, lds))
        if os.environ.get("DUP", "") and os.environ["DUP"] in n:
            out.append("; @launch kernel=%s grid=(%d,1,1) block=(%d,1,1) lds=%d" % (n, g, b, lds))
    out.append('.amdgcn_target "amdgcn-amd-amdhsa--gfx950"')
    out.append(".text")
    out += A.lines
    out.append('.section .rodata,"a"')
    for k in KDS:
        out.append(".p2align 6")
        out.append(k)
    open(sys.argv[1], "w").write("\n".join(out) + "\n")

if __name__ == "__main__":
    main()
```

```python
import sys

NAME = "adaLN_cond__softmax_full_mha__dense_activation_silu__prompt"

def al(x, a=65536): return (x + a - 1) // a * a
MOD_OFF = 0;                 MOD_SZ = 2688 * 4
WQKV_OFF = al(MOD_OFF + MOD_SZ); WQKV_SZ = 48 * 28 * 1024
WO_OFF = al(WQKV_OFF + WQKV_SZ); WO_SZ = 14 * 32 * 1024
W1_OFF = al(WO_OFF + WO_SZ);  W1_SZ = 56 * 28 * 1024
W2_OFF = al(W1_OFF + W1_SZ);  W2_SZ = 14 * 112 * 1024
Q_OFF = al(W2_OFF + W2_SZ);   QKV_SZ = 16 * 64 * 2 * 1024
K_OFF = Q_OFF + QKV_SZ
V_OFF = K_OFF + QKV_SZ
O_OFF = V_OFF + QKV_SZ;       O_SZ = 64 * 32 * 1024
X2_OFF = al(O_OFF + O_SZ);    X_SZ = 2048 * 448 * 2
H1_OFF = al(X2_OFF + X_SZ);   H1_SZ = 64 * 112 * 1024
WS_END = H1_OFF + H1_SZ

import os
STF = os.environ.get("STF", "sc1")
class Asm:
    def __init__(self):
        self.lines = []
        self.uid = 0
    def __call__(self, s):
        for l in s.strip().split("\n"):
            l = l.strip()
            if l.endswith("#plain"):
                l = l[:-6].strip()
            elif STF and l.startswith("buffer_store_dwordx4"):
                l = l + " " + STF
            self.lines.append("    " + l)
    def label(self, l):
        self.lines.append(l + ":")
    def new(self, p="L"):
        self.uid += 1
        return "%s_%d" % (p, self.uid)
    def raw(self, s):
        self.lines.append(s)

A = Asm()

def vr(b, n=1):
    return "v%d" % b if n == 1 else "v[%d:%d]" % (b, b + n - 1)
def sr(b, n=1):
    return "s%d" % b if n == 1 else "s[%d:%d]" % (b, b + n - 1)

P_X, P_WQKV, P_WO, P_BX, P_W1, P_W2, P_C, P_WMOD = 16, 18, 20, 22, 24, 26, 28, 30
P_OUT, P_DBG, P_WS = 32, 34, 36

def kernel_begin(name, nwg):
    NST[0] = 0
    KIDX[0] = len(KDS)
    A.raw(".globl %s" % name)
    A.raw(".p2align 8")
    A.raw(".type %s,@function" % name)
    A.label(name)
    A("s_cmp_ge_u32 s2, %d" % nwg)
    A("s_cbranch_scc1 %s_end" % name)
    A("s_load_dwordx16 s[16:31], s[0:1], 0")
    A("s_load_dwordx4 s[32:35], s[0:1], 64")
    A("s_load_dwordx2 s[36:37], s[0:1], 80")
    if STAMP:
        A("s_memrealtime s[96:97]")
        A("v_mov_b32 v255, 0")

def kernel_end(name):
    A.label(name + "_end")
    A("s_endpgm")

KDS = []
def kernel_desc(name, vgpr, sgpr=100):
    if STAMP: vgpr = 256
    vg = (vgpr + 7) // 8 * 8
    KDS.append(""".amdhsa_kernel %s
  .amdhsa_next_free_vgpr %d
  .amdhsa_next_free_sgpr %d
  .amdhsa_accum_offset %d
  .amdhsa_group_segment_fixed_size 0
  .amdhsa_kernarg_size 88
  .amdhsa_user_sgpr_count 2
  .amdhsa_user_sgpr_kernarg_segment_ptr 1
  .amdhsa_system_sgpr_workgroup_id_x 1
.end_amdhsa_kernel""" % (name, vg, sgpr, vg))

def srd(d, p, off, size):
    if off:
        A("s_add_u32 s%d, s%d, 0x%x" % (d, p, off))
        A("s_addc_u32 s%d, s%d, 0" % (d + 1, p + 1))
    else:
        A("s_mov_b32 s%d, s%d" % (d, p))
        A("s_mov_b32 s%d, s%d" % (d + 1, p + 1))
    A("s_mov_b32 s%d, 0x%x" % (d + 2, size))
    A("s_mov_b32 s%d, 0x20000" % (d + 3))

import os
STAMP = 1 if os.environ.get("STAMP", "") not in ("", "0") else 0
STAMP_OFF = 48 << 20
KIDX = [0]
NST = [0]
def stamp():
    if not STAMP: return
    i = NST[0]
    if i >= 13: return
    NST[0] += 1
    A("s_memtime s[92:93]")
    A("s_waitcnt lgkmcnt(0)")
    A("v_writelane_b32 v255, s92, %d" % i)
def stamp_flush(tmpv=250):
    if not STAMP: return
    stamp()
    srd(72, P_WS, STAMP_OFF + KIDX[0] * 256 * 16 * 64, 256 * 16 * 64)
    A("s_memrealtime s[92:93]")
    A("s_waitcnt lgkmcnt(0)")
    A("v_writelane_b32 v255, s96, 14")
    A("v_writelane_b32 v255, s92, 15")
    A("v_lshrrev_b32 v%d, 6, v0" % tmpv)
    A("s_lshl_b32 s94, s2, 4")
    A("v_add_u32 v%d, s94, v%d" % (tmpv, tmpv))
    A("v_lshlrev_b32 v%d, 6, v%d" % (tmpv, tmpv))
    A("v_and_b32 v%d, 63, v0" % (tmpv + 1))
    A("v_lshl_add_u32 v%d, v%d, 2, v%d" % (tmpv, tmpv + 1, tmpv))
    A("s_mov_b64 exec, 0xffff")
    A("buffer_store_dword v255, v%d, s[72:75], 0 offen" % tmpv)
    A("s_waitcnt vmcnt(0)")
    A("s_mov_b64 exec, -1")

def nops(n):
    while n > 0:
        k = min(n, 16)
        A("s_nop %d" % (k - 1))
        n -= k

def gen_prep():
    name = "prep_kernel"
    NW_MOD, NW_QKV, NW_WO, NW_W1, NW_W2 = 21, 48, (112 if os.environ.get('SIDE', '0') == '0' else 16), 0, 0
    b1 = NW_MOD; b2 = b1 + NW_QKV; b3 = b2 + NW_WO; b4 = b3 + NW_W1; b5 = b4 + NW_W2
    kernel_begin(name, b5)
    A("v_and_b32 v1, 7, v0")
    A("v_bfe_u32 v2, v0, 3, 1")
    A("v_lshrrev_b32 v3, 4, v0")
    A("s_waitcnt lgkmcnt(0)")
    A("s_cmp_lt_u32 s2, %d" % b1)
    A("s_cbranch_scc1 prep_mod")
    A("s_mov_b32 s60, 0x05040100")
    A("s_mov_b32 s61, 0x07060302")
    A("s_cmp_lt_u32 s2, %d" % b2)
    A("s_cbranch_scc1 prep_qkv")
    A("v_lshrrev_b32 v40, 6, v0")
    A("v_and_b32 v41, 63, v0")
    A("v_readfirstlane_b32 s40, v40")
    A("v_lshlrev_b32 v42, 4, v41")
    A("s_sub_u32 s72, s2, %d" % b2)
    A("s_lshl_b32 s72, s72, 3")
    A("s_add_u32 s72, s72, s40")
    if os.environ.get('SIDE', '0') == '1':
        A("s_add_u32 s72, s72, 896")
    A("s_lshl_b32 s92, s40, 12")
    PL = lambda s: "prep_%s" % s
    emit_rl_decode(PL, 72, 48, 41)
    emit_rl_body(48, 41, 42, 92, plain=True)
    if os.environ.get("CPF", "1") == "1":
        A("s_cmp_ge_u32 s2, %d" % (b2 + 16))
        A("s_cbranch_scc1 prep_nopf")
        A("s_getpc_b64 s[94:95]")
        A.label("prep_pc")
        A("s_add_u32 s94, s94, qkv_kernel-prep_pc")
        A("s_addc_u32 s95, s95, 0")
        A("v_lshlrev_b32 v43, 6, v0")
        A("global_load_dword v44, v43, s[94:95]")
        A("v_add_u32 v43, 0x8000, v43")
        A("v_cmp_gt_u32 vcc, (mlp2_kernel_end-qkv_kernel), v43")
        A("s_and_saveexec_b64 s[96:97], vcc")
        A("s_cbranch_execz prep_nopf")
        A("global_load_dword v45, v43, s[94:95]")
        A.label("prep_nopf")
    stamp_flush()
    NST[0] = 0
    A("s_endpgm")
    def common(RS, nunits):
        A("s_mov_b32 s50, %d" % RS)
        A("s_mov_b32 s51, %d" % (2 * RS))
        A("s_mov_b32 s52, %d" % (3 * RS))
        if nunits < 512:
            A("v_cmp_gt_u32 vcc, %d, v0" % nunits)
            A("s_and_saveexec_b64 s[54:55], vcc")
            A("s_cbranch_execz %s_end" % name)
        for grp, vo in ((0, 4), (1, 5)):
            for i in range(4):
                so = "0" if i == 0 else "s%d" % (49 + i)
                A("buffer_load_dwordx2 %s, v%d, s[40:43], %s offen" % (vr(8 + 2 * (grp * 4 + i), 2), vo, so))
        A("v_lshlrev_b32 v6, 6, v0")
        A("s_waitcnt vmcnt(0)")
        for i in range(4):
            sel = "s61" if (i & 1) else "s60"
            for p in range(4):
                A("v_perm_b32 v%d, v%d, v%d, %s" % (24 + 4 * i + p, 8 + 2 * (2 * p + 1) + (i >> 1), 8 + 2 * (2 * p) + (i >> 1), sel))
        for i in range(4):
            A("ds_write_b128 v6, %s offset:%d" % (vr(24 + 4 * i, 4), 16 * i))
        A("v_and_b32 v7, 63, v0")
        A("v_lshrrev_b32 v6, 6, v0")
        A("v_lshlrev_b32 v6, 12, v6")
        A("v_lshl_add_u32 v6, v7, 4, v6")
        A("s_waitcnt lgkmcnt(0)")
        for i in range(4):
            A("ds_read_b128 %s, v6 offset:%d" % (vr(24 + 4 * i, 4), 1024 * i))
        for i in range(4):
            A("s_waitcnt lgkmcnt(%d)" % (3 - i))
            A("buffer_store_dwordx4 %s, v6, s[44:47], s48 offen offset:%d" % (vr(24 + 4 * i, 4), 1024 * i))
        n0 = NST[0]
        stamp_flush()
        NST[0] = n0
        A("s_endpgm")

    A.label("prep_qkv")
    RS = 2688
    A("s_sub_u32 s56, s2, %d" % b1)
    A("s_mul_i32 s57, s56, 171")
    A("s_lshr_b32 s57, s57, 9")
    A("s_mul_i32 s58, s57, 3")
    A("s_sub_u32 s58, s56, s58")
    A("s_mul_i32 s58, s58, 896")
    A("s_mul_i32 s57, s57, 56")
    A("s_add_u32 s58, s58, s57")
    srd(40, P_WQKV, 0, 448 * 1344 * 2)
    srd(44, P_WS, WQKV_OFF, WQKV_SZ)
    A("s_mul_i32 s48, s56, %d" % (28 * 1024))
    A("v_lshlrev_b32 v4, 4, v3")
    A("v_lshl_add_u32 v4, v2, 3, v4")
    A("s_mov_b32 s59, %d" % RS)
    A("v_mul_lo_u32 v4, v4, s59")
    A("v_lshl_add_u32 v4, v1, 3, v4")
    A("v_add_u32 v4, s58, v4")
    A("v_add_u32 v5, %d, v4" % (4 * RS))
    A("v_mov_b32 v7, 0x7f000000")
    A("v_cmp_eq_u32 vcc, 7, v1")
    A("s_nop 1")
    A("v_cndmask_b32 v4, v4, v7, vcc")
    A("v_cndmask_b32 v5, v5, v7, vcc")
    common(RS, 448)

    A.label("prep_mod")
    stamp()
    srd(40, P_WMOD, 0, 448 * 2688 * 2)
    srd(44, P_C, 0, 896)
    srd(48, P_WS, MOD_OFF, MOD_SZ)
    A("v_lshrrev_b32 v1, 6, v0")
    A("v_and_b32 v2, 63, v0")
    A("v_readfirstlane_b32 s56, v1")
    A("s_nop 3")
    A("s_mul_i32 s57, s56, 112")
    A("v_lshlrev_b32 v3, 1, v2")
    A("buffer_load_ushort v4, v3, s[44:47], s57 offen")
    A("s_lshl_b32 s58, s2, 8")
    A("v_lshlrev_b32 v5, 2, v2")
    A("v_add_u32 v5, s58, v5")
    A("s_mul_i32 s59, s56, %d" % (56 * 5376))
    for i in range(56):
        A("buffer_load_dword v%d, v5, s[40:43], s59 offen" % (16 + i))
        A("s_add_u32 s59, s59, 5376")
    stamp()
    A("s_waitcnt vmcnt(56)")
    stamp()
    A("v_lshlrev_b32 v4, 16, v4")
    A("v_mul_f32 v6, 0xbfb8aa3b, v4")
    A("v_exp_f32 v6, v6")
    A("s_nop 0")
    A("v_add_f32 v6, 1.0, v6")
    A("v_rcp_f32 v6, v6")
    A("s_nop 0")
    A("v_mul_f32 v6, v4, v6")
    A("v_mov_b32 v8, 0")
    A("v_mov_b32 v9, 0")
    for i in range(56):
        A("v_readlane_b32 s60, v6, %d" % i)
        A("s_waitcnt vmcnt(%d)" % (55 - i))
        A("v_lshlrev_b32 v10, 16, v%d" % (16 + i))
        A("v_and_b32 v11, 0xffff0000, v%d" % (16 + i))
        A("v_fmac_f32 v8, s60, v10")
        A("v_fmac_f32 v9, s60, v11")
    stamp()
    A("v_lshlrev_b32 v12, 3, v0")
    A("ds_write_b64 v12, v[8:9]")
    A("s_waitcnt lgkmcnt(0)")
    A("s_barrier")
    A("s_cmp_lg_u32 s56, 0")
    A("s_cbranch_scc1 %s_end" % name)
    for w in range(8):
        A("ds_read_b64 %s, v12 offset:%d" % (vr(16 + 2 * w, 2), 512 * w))
    A("s_waitcnt lgkmcnt(0)")
    for w in range(1, 8):
        A("v_add_f32 v16, v16, v%d" % (16 + 2 * w))
        A("v_add_f32 v17, v17, v%d" % (17 + 2 * w))
    A("s_lshl_b32 s58, s2, 7")
    A("v_lshlrev_b32 v3, 1, v2")
    A("v_add_u32 v3, s58, v3")
    A("v_subrev_u32 v10, 448, v3")
    A("v_cmp_gt_u32 vcc, 448, v10")
    A("s_nop 1")
    A("s_mov_b64 s[62:63], vcc")
    A("v_subrev_u32 v11, 1792, v3")
    A("v_cmp_gt_u32 vcc, 448, v11")
    A("s_nop 1")
    A("s_or_b64 vcc, vcc, s[62:63]")
    A("v_add_f32 v18, 1.0, v16")
    A("v_add_f32 v19, 1.0, v17")
    A("s_nop 1")
    A("v_cndmask_b32 v16, v16, v18, vcc")
    A("v_cndmask_b32 v17, v17, v19, vcc")
    A("v_lshlrev_b32 v3, 2, v3")
    A("buffer_store_dwordx2 v[16:17], v3, s[48:51], 0 offen")
    stamp_flush()
    kernel_end(name)
    kernel_desc(name, 96)
    return (name, b5, 512, 32768)


def emit_rl_decode(L, su, RL, lane):
    A("s_min_u32 s74, s%d, 895" % su)
    A("s_cmp_lt_u32 s74, 112")
    A("s_cbranch_scc1 %s" % L("rl_wo"))
    A("s_cmp_lt_u32 s74, 504")
    A("s_cbranch_scc1 %s" % L("rl_w1"))
    A("s_sub_u32 s74, s74, 504")
    A("s_mul_i32 s75, s74, 2341")
    A("s_lshr_b32 s75, s75, 16")
    A("s_mul_i32 s76, s75, 28")
    A("s_sub_u32 s76, s74, s76")
    srd(84, P_W2, 0, 1792 * 448 * 2)
    A("s_mov_b32 s77, 896")
    A("s_mov_b32 s78, 32")
    A("s_mov_b32 s79, 4")
    A("s_mul_i32 s80, s75, 112")
    A("s_mov_b32 s81, 0x%x" % W2_OFF)
    A("s_mov_b32 s82, 0")
    A("s_branch %s" % L("rl_go"))
    A.label(L("rl_w1"))
    A("s_sub_u32 s74, s74, 112")
    A("s_mul_i32 s75, s74, 9363")
    A("s_lshr_b32 s75, s75, 16")
    A("s_mul_i32 s76, s75, 7")
    A("s_sub_u32 s76, s74, s76")
    srd(84, P_W1, 0, 448 * 1792 * 2)
    A("s_mov_b32 s77, 3584")
    A("s_mov_b32 s78, 32")
    A("s_mov_b32 s79, 8")
    A("s_mul_i32 s80, s75, 28")
    A("s_mov_b32 s81, 0x%x" % W1_OFF)
    A("s_mov_b32 s82, 0")
    A("s_branch %s" % L("rl_go"))
    A.label(L("rl_wo"))
    A("s_lshr_b32 s75, s74, 3")
    A("s_and_b32 s76, s74, 7")
    srd(84, P_WO, 0, 448 * 448 * 2)
    A("s_mov_b32 s77, 896")
    A("s_mov_b32 s78, 28")
    A("s_mov_b32 s79, 4")
    A("s_lshl_b32 s80, s75, 5")
    A("s_mov_b32 s81, 0x%x" % WO_OFF)
    A("s_mov_b32 s82, 1")
    A.label(L("rl_go"))
    srd(88, P_WS, 0, W2_OFF + W2_SZ)
    A("s_cmp_ge_u32 s%d, 896" % su)
    A("s_cselect_b32 s86, 0, s86")
    A("s_cselect_b32 s90, 0, s90")
    A("s_lshl_b32 s83, s76, 2")
    A("s_add_u32 s80, s80, s83")
    A("s_lshl_b32 s80, s80, 10")
    A("s_add_u32 s81, s81, s80")
    A("v_and_b32 v%d, 7, v%d" % (RL, lane))
    A("v_bfe_u32 v%d, v%d, 3, 1" % (RL + 1, lane))
    A("v_lshrrev_b32 v%d, 4, v%d" % (RL + 2, lane))
    A("v_add_u32 v%d, s83, v%d" % (RL + 2, RL + 2))
    A("v_lshrrev_b32 v%d, 1, v%d" % (RL + 3, RL + 2))
    A("v_mul_lo_u32 v%d, v%d, s78" % (RL + 3, RL + 3))
    A("v_and_b32 v%d, 1, v%d" % (RL + 4, RL + 2))
    A("v_lshl_add_u32 v%d, v%d, 4, v%d" % (RL + 3, RL + 4, RL + 3))
    A("v_mul_lo_u32 v%d, v%d, s79" % (RL + 5, RL + 1))
    A("v_add_u32 v%d, v%d, v%d" % (RL + 3, RL + 3, RL + 5))
    A("v_mul_lo_u32 v%d, v%d, s77" % (RL + 3, RL + 3))
    A("v_lshl_add_u32 v%d, v%d, 3, v%d" % (RL + 3, RL, RL + 3))
    A("s_lshl_b32 s83, s75, 6")
    A("v_add_u32 v%d, s83, v%d" % (RL + 3, RL + 3))
    A("s_sub_u32 s83, 12, s79")
    A("s_mul_i32 s83, s83, s77")
    A("v_add_u32 v%d, s83, v%d" % (RL + 5, RL + 3))
    A("v_and_b32 v%d, v%d, v%d" % (RL + 4, RL + 4, RL + 1))
    A("v_and_b32 v%d, s82, v%d" % (RL + 4, RL + 4))
    A("v_mov_b32 v%d, 0x7f000000" % (RL + 6))
    A("v_cmp_eq_u32 vcc, 1, v%d" % (RL + 4))
    A("s_lshl_b32 s78, s77, 1")
    A("s_add_u32 s79, s78, s77")
    A("v_cndmask_b32 v%d, v%d, v%d, vcc" % (RL + 5, RL + 5, RL + 6))

def emit_rl_body(RL, lane, lane16, scratch_sreg, plain=False):
    for grp, vo in ((0, RL + 3), (1, RL + 5)):
        for i, so in enumerate(("0", "s77", "s78", "s79")):
            A("buffer_load_dwordx2 %s, v%d, s[84:87], %s offen" % (vr(RL + 8 + 2 * (grp * 4 + i), 2), vo, so))
    A("s_mov_b32 s74, 0x05040100")
    A("s_mov_b32 s75, 0x07060302")
    A("v_lshlrev_b32 v%d, 6, v%d" % (RL, lane))
    A("v_add_u32 v%d, s%d, v%d" % (RL, scratch_sreg, RL))
    A("v_add_u32 v%d, s%d, v%d" % (RL + 1, scratch_sreg, lane16))
    A("s_waitcnt vmcnt(0)")
    for i in range(4):
        sel = "s75" if (i & 1) else "s74"
        for p in range(4):
            A("v_perm_b32 v%d, v%d, v%d, %s" % (RL + 24 + 4 * i + p, RL + 8 + 2 * (2 * p + 1) + (i >> 1), RL + 8 + 2 * (2 * p) + (i >> 1), sel))
    for i in range(4):
        A("ds_write_b128 v%d, %s offset:%d" % (RL, vr(RL + 24 + 4 * i, 4), 16 * i))
    A("s_waitcnt lgkmcnt(0)")
    for i in range(4):
        A("ds_read_b128 %s, v%d offset:%d" % (vr(RL + 24 + 4 * i, 4), RL + 1, 1024 * i))
    for i in range(4):
        A("s_waitcnt lgkmcnt(%d)" % (3 - i))
        A("buffer_store_dwordx4 %s, v%d, s[88:91], s81 offen offset:%d%s" % (vr(RL + 24 + 4 * i, 4), lane16, 1024 * i, " #plain" if plain else ""))

def gen_lngemm(kind):
    name = "qkv_kernel" if kind == "qkv" else "mlp1_kernel"
    NCT = 6 if kind == "qkv" else 7
    MODL = 57344
    kernel_begin(name, 256)
    L = lambda s: "%s_%s" % (name, s)
    A("v_lshrrev_b32 v1, 6, v0")
    A("v_and_b32 v2, 63, v0")
    A("v_readfirstlane_b32 s40, v1")
    A("s_lshr_b32 s43, s2, 3")
    A("s_bfe_u32 s41, s2, 0x20001")
    A("s_lshl_b32 s41, s41, 3")
    A("s_and_b32 s42, s43, 7")
    A("s_add_u32 s41, s41, s42")
    A("s_and_b32 s42, s2, 1")
    A("s_lshl_b32 s42, s42, 2")
    A("s_lshr_b32 s43, s43, 3")
    A("s_add_u32 s42, s42, s43")
    A("v_and_b32 v3, 7, v2")
    A("v_lshrrev_b32 v4, 3, v2")
    A("s_waitcnt lgkmcnt(0)")
    stamp()
    if kind == "qkv":
        srd(44, P_X, 0, X_SZ)
        srd(48, P_WS, MOD_OFF, 3584)
        srd(52, P_WS, WQKV_OFF, WQKV_SZ)
    else:
        srd(44, P_WS, X2_OFF, X_SZ)
        srd(48, P_WS, MOD_OFF + 1344 * 4, 3584)
        srd(52, P_WS, W1_OFF, W1_SZ)
    A("s_lshl_b32 s60, s41, 6")
    A("s_lshl_b32 s61, s40, 3")
    A("s_add_u32 s60, s60, s61")
    A("v_add_u32 v5, s60, v3")
    A("v_mul_u32_u24 v5, 896, v5")
    A("v_lshl_add_u32 v5, v4, 4, v5")
    XR = 8
    for i in range(7):
        A("buffer_load_dwordx4 %s, v5, s[44:47], 0 offen offset:%d" % (vr(XR + 4 * i, 4), 128 * i))
        if os.environ.get("LAT") and i == 0:
            stamp()
            A("s_waitcnt vmcnt(0)")
            stamp()
    if os.environ.get("LAT"):
        stamp()
        A("s_waitcnt vmcnt(0)")
        stamp()
    A("v_lshlrev_b32 v6, 4, v0")
    A("buffer_load_dwordx4 v[36:39], v6, s[48:51], 0 offen")
    WR = 128
    A("v_lshlrev_b32 v7, 4, v2")
    A("s_mul_i32 s62, s42, %d" % NCT)
    A("s_add_u32 s62, s62, s40")
    A("s_mul_i32 s63, s62, %d" % (28 * 1024))
    A("s_lshr_b32 s60, s40, 2")
    A("s_mul_i32 s60, s60, 28672")
    A("s_and_b32 s61, s40, 3")
    A("s_lshl_b32 s61, s61, 7")
    A("s_add_u32 s60, s60, s61")
    A("s_barrier")
    XF = 40
    def ln_phase(withw, mode="A"):
        NPRE = int(os.environ.get("NPRE", "8"))
        PER = int(os.environ.get("PER", "18"))
        if os.environ.get("SPLIT", "0") == "1":
            NPRE, PER = (28, 1000) if mode == "A" else (0, 1000)
        wl = []
        for k in range(28):
            wl.append("buffer_load_dwordx4 %s, v7, s[52:55], s63 offen offset:%d" % (vr(WR + 4 * k, 4), 1024 * (k & 3)))
            if (k & 3) == 3:
                wl[-1] += "\ns_add_u32 s63, s63, 4096"
        if not withw: wl = []
        for k in range(min(NPRE, len(wl))):
            A(wl.pop(0))
        A("s_waitcnt vmcnt(%d)" % (NPRE if withw else 0))
        stamp()
        cnt = [0]
        def V(t):
            A(t)
            cnt[0] += 1
            if wl and cnt[0] % PER == 0:
                A(wl.pop(0))
        V("v_add_u32 v6, %d, v6" % MODL)
        V("ds_write_b128 v6, v[36:39]")
        for r in range(28):
            V("v_lshlrev_b32 v%d, 16, v%d" % (XF + 2 * r, XR + r))
            V("v_and_b32 v%d, 0xffff0000, v%d" % (XF + 2 * r + 1, XR + r))
        pr = lambda r: vr(r, 2)
        V("v_pk_add_f32 v[96:97], %s, %s" % (pr(XF), pr(XF + 2)))
        V("v_pk_add_f32 v[98:99], %s, %s" % (pr(XF + 4), pr(XF + 6)))
        for e in range(4, 28):
            a = 96 + 2 * (e & 1)
            V("v_pk_add_f32 %s, %s, %s" % (pr(a), pr(a), pr(XF + 2 * e)))
        V("v_pk_add_f32 v[96:97], v[96:97], v[98:99]")
        V("v_add_f32 v96, v96, v97")
        def xreduce(r, t1, t2):
            V("s_nop 1")
            V("v_add_f32_dpp v%d, v%d, v%d row_ror:8 row_mask:0xf bank_mask:0xf" % (t1, r, r))
            V("v_mov_b32 v%d, v%d" % (t2, t1))
            V("s_nop 1")
            V("v_permlane16_swap_b32 v%d, v%d" % (t1, t2))
            V("s_nop 1")
            V("v_add_f32 v%d, v%d, v%d" % (t1, t1, t2))
            V("v_mov_b32 v%d, v%d" % (t2, t1))
            V("s_nop 1")
            V("v_permlane32_swap_b32 v%d, v%d" % (t1, t2))
            V("s_nop 1")
            V("v_add_f32 v%d, v%d, v%d" % (r, t1, t2))
        xreduce(96, 100, 101)
        V("v_mul_f32 v96, 0x%08x, v96" % f2u(-1.0 / 448))
        V("v_mov_b32 v97, v96")
        for e in range(28):
            V("v_pk_add_f32 %s, %s, v[96:97]" % (pr(XF + 2 * e), pr(XF + 2 * e)))
        V("v_pk_mul_f32 v[98:99], %s, %s" % (pr(XF), pr(XF)))
        V("v_pk_mul_f32 v[100:101], %s, %s" % (pr(XF + 2), pr(XF + 2)))
        for e in range(2, 28):
            a = 98 + 2 * (e & 1)
            V("v_pk_fma_f32 %s, %s, %s, %s" % (pr(a), pr(XF + 2 * e), pr(XF + 2 * e), pr(a)))
        V("v_pk_add_f32 v[98:99], v[98:99], v[100:101]")
        V("v_add_f32 v97, v98, v99")
        xreduce(97, 100, 101)
        V("v_mov_b32 v98, 0x%08x" % f2u(1e-5))
        V("v_fmac_f32 v98, 0x%08x, v97" % f2u(1.0 / 448))
        V("v_rsq_f32 v98, v98")
        V("v_lshlrev_b32 v5, 5, v4")
        V("v_add_u32 v5, %d, v5" % MODL)
        V("v_lshrrev_b32 v6, 1, v4")
        V("v_lshlrev_b32 v6, 10, v6")
        V("v_and_b32 v36, 1, v4")
        V("v_lshl_add_u32 v6, v36, 9, v6")
        V("v_lshl_add_u32 v6, v3, 4, v6")
        V("v_add_u32 v6, s60, v6")
        V("v_mov_b32 v99, v98")
        if os.environ.get("SPLIT", "0") == "1" and mode == "B":
            while wl: A(wl.pop(0))
        A("s_waitcnt lgkmcnt(0)")
        stamp()
        A("s_barrier")
        stamp()
        def rdmod(i):
            b = 8 + 16 * (i & 1)
            V("ds_read_b128 %s, v5 offset:%d" % (vr(b, 4), 256 * i))
            V("ds_read_b128 %s, v5 offset:%d" % (vr(b + 4, 4), 256 * i + 16))
            V("ds_read_b128 %s, v5 offset:%d" % (vr(b + 8, 4), 1792 + 256 * i))
            V("ds_read_b128 %s, v5 offset:%d" % (vr(b + 12, 4), 1792 + 256 * i + 16))
        rdmod(0)
        for i in range(7):
            b = 8 + 16 * (i & 1)
            for j in range(4):
                V("v_pk_mul_f32 %s, %s, v[98:99]" % (pr(XF + 8 * i + 2 * j), pr(XF + 8 * i + 2 * j)))
            if i + 1 < 7:
                A("s_waitcnt lgkmcnt(1)" if i > 0 else "s_waitcnt lgkmcnt(0)")
                rdmod(i + 1)
            else:
                A("s_waitcnt lgkmcnt(0)")
            for j in range(4):
                V("v_pk_fma_f32 %s, %s, %s, %s" % (pr(XF + 8 * i + 2 * j), pr(XF + 8 * i + 2 * j), pr(b + 8 + 2 * j), pr(b + 2 * j)))
            hb = 100 + 4 * (i & 1)
            for p in range(4):
                V("v_cvt_pk_bf16_f32 v%d, v%d, v%d" % (hb + p, XF + 8 * i + 2 * p, XF + 8 * i + 2 * p + 1))
            V("ds_write_b128 v6, %s offset:%d" % (vr(hb, 4), 4096 * i))
        while wl: A(wl.pop(0))
        A("s_waitcnt lgkmcnt(0)")
        stamp()
        A("s_barrier")
        stamp()
    A("s_cmp_ge_u32 s40, %d" % NCT)
    A("s_cbranch_scc1 %s" % L("now"))
    n0 = NST[0]
    if os.environ.get("SPLIT", "0") == "1":
        A("s_cmp_ge_u32 s40, %d" % int(os.environ.get("SPLITW", "3")))
        A("s_cbranch_scc1 %s" % L("modeB"))
        ln_phase(True, "A")
        A("s_branch %s" % L("gemm"))
        A.label(L("modeB"))
        NST[0] = n0
        ln_phase(True, "B")
    else:
        ln_phase(True)
    A("s_branch %s" % L("gemm"))
    A.label(L("now"))
    n1 = NST[0]; NST[0] = n0
    ln_phase(False)
    if kind == "qkv" and os.environ.get("SIDE", "0") == "1":
        A("s_lshl_b32 s72, s2, 1")
        A("s_add_u32 s72, s72, s40")
        A("s_sub_u32 s72, s72, 6")
        A("s_lshl_b32 s92, s40, 12")
        A("s_add_u32 s92, s92, %d" % (57344 + 8192 - 6 * 4096))
        A.label(L("side"))
        emit_rl_decode(L, 72, 192, 2)
        emit_rl_body(192, 2, 7, 92, plain=(os.environ.get("SIDE_PLAIN", "0") == "1"))
        A("s_add_u32 s72, s72, 512")
        A("s_cmp_lt_u32 s72, 896")
        A("s_cbranch_scc1 %s" % L("side"))
    A("s_endpgm")
    A.label(L("gemm"))
    ACC = 8
    HB = 40
    def gemm(transposed):
        NPF = 3
        def rd(s):
            b = HB + 8 * (s % 4)
            A("ds_read_b128 %s, v7 offset:%d" % (vr(b, 4), s * 1024))
            A("ds_read_b128 %s, v7 offset:%d" % (vr(b + 4, 4), 28672 + s * 1024))
        for s in range(NPF):
            rd(s)
        for s in range(28):
            if s + NPF < 28:
                rd(s + NPF)
                A("s_waitcnt lgkmcnt(%d)" % (2 * NPF))
            else:
                A("s_waitcnt lgkmcnt(%d)" % (2 * (27 - s)))
            b = HB + 8 * (s % 4)
            A("s_waitcnt vmcnt(%d)" % (27 - s))
            for T in range(2):
                c = "0" if s == 0 else vr(ACC + 16 * T, 16)
                w = vr(WR + 4 * s, 4); h = vr(b + 4 * T, 4)
                if transposed:
                    A("v_mfma_f32_32x32x16_bf16 %s, %s, %s, %s" % (vr(ACC + 16 * T, 16), w, h, c))
                else:
                    A("v_mfma_f32_32x32x16_bf16 %s, %s, %s, %s" % (vr(ACC + 16 * T, 16), h, w, c))
        nops(16)
    def pack_store(T, srdreg, soff):
        for p in range(8):
            A("v_cvt_pk_bf16_f32 v%d, v%d, v%d" % (72 + p, ACC + 16 * T + 2 * p, ACC + 16 * T + 2 * p + 1))
        A("buffer_store_dwordx4 v[72:75], v7, s[%d:%d], %s offen" % (srdreg, srdreg + 3, soff))
        A("buffer_store_dwordx4 v[76:79], v7, s[%d:%d], %s offen offset:1024" % (srdreg, srdreg + 3, soff))
        A("s_nop 1")
    if kind == "qkv":
        srd(56, P_WS, Q_OFF, 3 * QKV_SZ)
        A("s_lshl_b32 s64, s42, 1")
        A("s_cmp_ge_u32 s40, 3")
        A("s_cselect_b32 s65, 1, 0")
        A("s_add_u32 s64, s64, s65")
        A("s_mul_i32 s65, s65, 3")
        A("s_sub_u32 s65, s40, s65")
        A("s_mul_i32 s66, s65, 0x%x" % QKV_SZ)
        A("s_lshl_b32 s67, s64, 17")
        A("s_add_u32 s66, s66, s67")
        A("s_lshl_b32 s67, s41, 12")
        A("s_add_u32 s66, s66, s67")
        A("s_add_u32 s67, s66, 2048")
        A("s_cmp_eq_u32 s65, 2")
        A("s_cbranch_scc1 %s" % L("v"))
        gemm(True)
        stamp()
        A("s_cmp_eq_u32 s65, 1")
        A("s_cbranch_scc1 %s" % L("kst"))
        import math
        A("s_mov_b32 s68, 0x%08x" % f2u(math.log2(math.e) / math.sqrt(28.0)))
        for r in range(32):
            A("v_mul_f32 v%d, s68, v%d" % (ACC + r, ACC + r))
        A.label(L("kst"))
        pack_store(0, 56, "s66")
        pack_store(1, 56, "s67")
        n0 = NST[0]
        stamp_flush()
        A("s_endpgm")
        NST[0] = n0
        A.label(L("v"))
        gemm(False)
        stamp()
        A("v_and_b32 v80, 31, v2")
        A("v_cmp_eq_u32 vcc, 28, v80")
        A("v_mov_b32 v81, 1.0")
        A("s_nop 1")
        for r in range(32):
            A("v_cndmask_b32 v%d, v%d, v81, vcc" % (ACC + r, ACC + r))
        pack_store(0, 56, "s66")
        pack_store(1, 56, "s67")
    else:
        srd(56, P_WS, H1_OFF, H1_SZ)
        gemm(True)
        stamp()
        for r in range(32):
            A("v_mul_f32 v%d, 0xbfb8aa3b, v%d" % (80 + r, ACC + r))
        for r in range(32):
            A("v_exp_f32 v%d, v%d" % (80 + r, 80 + r))
        for r in range(32):
            A("v_add_f32 v%d, 1.0, v%d" % (80 + r, 80 + r))
        for r in range(32):
            A("v_rcp_f32 v%d, v%d" % (80 + r, 80 + r))
        for r in range(32):
            A("v_mul_f32 v%d, v%d, v%d" % (ACC + r, ACC + r, 80 + r))
        A("s_lshl_b32 s66, s41, 1")
        A("s_mul_i32 s66, s66, %d" % (112 * 1024))
        A("s_lshl_b32 s67, s62, 11")
        A("s_add_u32 s66, s66, s67")
        A("s_add_u32 s67, s66, %d" % (112 * 1024))
        pack_store(0, 56, "s66")
        pack_store(1, 56, "s67")
    stamp_flush()
    kernel_end(name)
    kernel_desc(name, 240)
    return (name, 256, 512, 57344 + 8192 + 8192)

import struct
def f2u(f):
    return struct.unpack("<I", struct.pack("<f", f))[0]

def gen_attn():
    name = "attn_kernel"
    kernel_begin(name, 256)
    L = lambda s: "%s_%s" % (name, s)
    FLAG = 131072
    A("v_lshrrev_b32 v1, 6, v0")
    A("v_and_b32 v2, 63, v0")
    A("v_readfirstlane_b32 s40, v1")
    A("s_and_b32 s41, s2, 15")
    A("s_lshr_b32 s42, s2, 4")
    A("v_lshlrev_b32 v3, 4, v2")
    A("v_mov_b32 v4, %d" % FLAG)
    A("v_mov_b32 v5, 0")
    A("ds_write_b32 v4, v5")
    A("s_waitcnt lgkmcnt(0)")
    srd(44, P_WS, Q_OFF, QKV_SZ)
    srd(48, P_WS, K_OFF, QKV_SZ)
    srd(52, P_WS, V_OFF, QKV_SZ)
    srd(56, P_WS, O_OFF, O_SZ)
    A("s_lshl_b32 s60, s42, 2")
    A("s_add_u32 s60, s60, s40")
    A("s_lshl_b32 s61, s41, 6")
    A("s_add_u32 s61, s61, s60")
    A("s_lshl_b32 s61, s61, 11")
    QF = 8
    A("buffer_load_dwordx4 %s, v3, s[44:47], s61 offen" % vr(QF, 4))
    A("buffer_load_dwordx4 %s, v3, s[44:47], s61 offen offset:1024" % vr(QF + 4, 4))
    A("s_lshl_b32 s63, s40, 11")
    def dma_init():
        A("s_lshl_b32 s62, s41, 17")
        A("s_add_u32 s62, s62, s63")
        A("s_mov_b32 s64, 0")
    def dma():
        A("s_add_u32 s65, s64, s63")
        A("s_mov_b32 m0, s65")
        A("s_add_u32 s65, s65, 8192")
        A("buffer_load_dwordx4 v3, s[48:51], s62 offen lds")
        A("buffer_load_dwordx4 v3, s[48:51], s62 offen offset:1024 lds")
        A("s_mov_b32 m0, s65")
        A("s_add_u32 s64, s64, 16384")
        A("buffer_load_dwordx4 v3, s[52:55], s62 offen lds")
        A("buffer_load_dwordx4 v3, s[52:55], s62 offen offset:1024 lds")
        A("s_add_u32 s62, s62, 8192")
        A("s_and_b32 s64, s64, 0xffff")
    O = 16
    S = [32, 48]; P = [64, 72]; KF = [80, 88]; VF = [96, 104]; NM = 112
    VC, VN = 4, 5
    def mfma(d, a, b, c):
        A("v_mfma_f32_32x32x16_bf16 %s, %s, %s, %s" % (vr(d, 16), vr(a, 4), vr(b, 4), c if isinstance(c, str) else vr(c, 16)))
    CH = int(os.environ.get("ATT_CH", "8"))
    NCH = 64 // CH
    CB = CH * 2048
    NSL = 4
    SLB = 2 * CB
    PW = CB // 4 // 1024
    vmq = ["q", "q"]
    def VM(l, tag):
        A(l); vmq.append(tag)
    def vmwait(tag, extra=""):
        idx = max(i for i, t in enumerate(vmq) if t == tag)
        A("s_waitcnt vmcnt(%d) %s" % (len(vmq) - 1 - idx, extra))
    A("s_mul_i32 s69, s40, %d" % (CB // 4))
    A("s_lshl_b32 s70, s41, 17")
    A("s_add_u32 s70, s70, s69")
    def fdma(c):
        out = []
        slot = (c % NSL) * SLB
        for op, sr_ in ((0, 48), (1, 52)):
            for p in range(PW):
                if p % 4 == 0:
                    out.append(("s_add_u32 s71, s69, %d" % (slot + op * CB + p * 1024), None))
                    out.append(("s_mov_b32 m0, s71", None))
                    out.append(("s_add_u32 s72, s70, %d" % (c * CB + p * 1024), None))
                out.append(("buffer_load_dwordx4 v3, s[%d:%d], s72 offen offset:%d lds" % (sr_, sr_ + 3, 1024 * (p % 4)), "c%d" % c))
        return out
    pend = []
    def drip(n):
        k = 0
        while pend and k < n:
            l, tag = pend.pop(0)
            if tag: VM(l, tag); k += 1
            else: A(l)
    pend += fdma(0); drip(1000)
    pend += fdma(1) + fdma(2)
    for r in range(16):
        A("v_mov_b32 v%d, 0" % (O + r))
    for r in range(8):
        A("v_mov_b32 v%d, 0" % (P[1] + r))
        A("v_mov_b32 v%d, 0" % (VF[1] + r))
    A("v_add_u32 v4, 0x10000, v3")
    def lds(dst, addr):
        if addr >= 65536:
            A("ds_read_b128 %s, v4 offset:%d" % (vr(dst, 4), addr - 65536))
        else:
            A("ds_read_b128 %s, v3 offset:%d" % (vr(dst, 4), addr))
    def kaddr(i): return ((i // CH) % NSL) * SLB + (i % CH) * 2048
    def vaddr(i): return ((i // CH) % NSL) * SLB + CB + (i % CH) * 2048
    stamp()
    vmwait("c0")
    A("s_barrier")
    stamp()
    drip(2 * PW)
    lds(KF[0], kaddr(0)); lds(KF[0] + 4, kaddr(0) + 1024)
    lds(KF[1], kaddr(1)); lds(KF[1] + 4, kaddr(1) + 1024)
    A("s_waitcnt lgkmcnt(2)")
    mfma(S[0], KF[0], QF, "0")
    mfma(S[0], KF[0] + 4, QF + 4, S[0])
    nops(16)
    s0 = S[0]
    A("v_max3_f32 v6, v%d, v%d, v%d" % (s0, s0 + 1, s0 + 2))
    for r in range(3, 15, 2):
        A("v_max3_f32 v6, v6, v%d, v%d" % (s0 + r, s0 + r + 1))
    A("v_max_f32 v6, v6, v%d" % (s0 + 15))
    A("v_mov_b32 v7, v6")
    A("s_nop 1")
    A("v_permlane32_swap_b32 v6, v7")
    A("s_nop 1")
    A("v_max_f32 v6, v6, v7")
    for r in range(16):
        A("v_sub_f32 v%d, 0, v6" % (NM + r))
    for r in range(16):
        A("v_sub_f32 v%d, v%d, v6" % (s0 + r, s0 + r))
    stamp()
    for i in range(64):
        c, t = i // CH, i % CH
        b = i & 1
        sc, sn = S[b], S[b ^ 1]
        pc, pp = P[b], P[b ^ 1]
        kn = KF[b ^ 1]; kl = KF[b]; vl = VF[b]; vp = VF[b ^ 1]
        if t == CH - 2 and c + 1 < NCH:
            assert not pend
            vmwait("c%d" % (c + 1), "lgkmcnt(0)")
            A("s_barrier")
            if c + 3 < NCH:
                pend += fdma(c + 3)
        else:
            A("s_waitcnt lgkmcnt(0)")
        def expcvt(q):
            for r in range(4 * q, 4 * q + 4):
                A("v_exp_f32 v%d, v%d" % (sc + r, sc + r))
            A("v_cvt_pk_bf16_f32 v%d, v%d, v%d" % (pc + 2 * q, sc + 4 * q, sc + 4 * q + 1))
            A("v_cvt_pk_bf16_f32 v%d, v%d, v%d" % (pc + 2 * q + 1, sc + 4 * q + 2, sc + 4 * q + 3))
        if i + 1 < 64: mfma(sn, kn, QF, NM)
        if i + 2 < 64:
            lds(kl, kaddr(i + 2)); lds(kl + 4, kaddr(i + 2) + 1024)
        expcvt(0)
        if i > 0: mfma(O, vp, pp, O)
        lds(vl, vaddr(i)); lds(vl + 4, vaddr(i) + 1024)
        drip(1)
        expcvt(1)
        if i + 1 < 64: mfma(sn, kn + 4, QF + 4, sn)
        drip(1)
        expcvt(2)
        if i > 0: mfma(O, vp + 4, pp + 4, O)
        expcvt(3)
    assert not pend
    stamp()
    A("s_waitcnt lgkmcnt(0)")
    mfma(O, VF[1], P[1], O)
    mfma(O, VF[1] + 4, P[1] + 4, O)
    nops(16)
    A("v_mov_b32 v6, v%d" % (O + 12))
    A("v_mov_b32 v7, v%d" % (O + 12))
    A("s_nop 1")
    A("v_permlane32_swap_b32 v6, v7")
    A("v_and_b32 v6, 0x7fffffff, v%d" % O)
    for r in range(1, 16):
        A("v_add_f32 v6, v6, abs(v%d)" % (O + r))
    A("v_add_f32 v6, v6, v7")
    A("v_mov_b32 v1, 0x7b800000")
    A("v_cmp_nlt_f32 vcc, v6, v1")
    A("s_nop 3")
    A("s_cmp_eq_u64 vcc, 0")
    A("s_cbranch_scc1 %s" % L("ok"))
    A("v_mov_b32 v4, %d" % FLAG)
    A("v_mov_b32 v5, 1")
    A("ds_write_b32 v4, v5")
    A.label(L("ok"))
    A("v_mov_b32 v4, %d" % FLAG)
    A("s_waitcnt lgkmcnt(0)")
    A("s_barrier")
    A("ds_read_b32 v5, v4")
    A("s_waitcnt lgkmcnt(0)")
    A("v_readfirstlane_b32 s68, v5")
    A("s_nop 3")
    A("s_cmp_eq_u32 s68, 0")
    A("s_cbranch_scc1 %s" % L("epi"))
    stamp()
    A("s_barrier")
    dma_init()
    dma(); dma(); dma()
    S0 = 32; KF0 = 48; VF0 = 56; P0 = 64
    for r in range(16):
        A("v_mov_b32 v%d, 0" % (O + r))
    A("v_mov_b32 v72, 0xff800000")
    A("s_mov_b32 s66, 0")
    A("s_mov_b32 s67, 0")
    A.label(L("loop"))
    A("s_cmp_ge_u32 s66, 13")
    A("s_cbranch_scc1 %s" % L("w0"))
    A("s_waitcnt vmcnt(8)")
    A("s_barrier")
    dma()
    A("s_branch %s" % L("go"))
    A.label(L("w0"))
    A("s_waitcnt vmcnt(0)")
    A("s_barrier")
    A.label(L("go"))
    A("v_add_u32 v4, s67, v3")
    for t in range(4):
        A("ds_read_b128 %s, v4 offset:%d" % (vr(KF0, 4), 2048 * t))
        A("ds_read_b128 %s, v4 offset:%d" % (vr(KF0 + 4, 4), 2048 * t + 1024))
        A("ds_read_b128 %s, v4 offset:%d" % (vr(VF0, 4), 8192 + 2048 * t))
        A("ds_read_b128 %s, v4 offset:%d" % (vr(VF0 + 4, 4), 8192 + 2048 * t + 1024))
        A("s_waitcnt lgkmcnt(2)")
        mfma(S0, KF0, QF, "0")
        mfma(S0, KF0 + 4, QF + 4, S0)
        nops(16)
        A("v_max3_f32 v73, v%d, v%d, v%d" % (S0, S0 + 1, S0 + 2))
        for r in range(3, 15, 2):
            A("v_max3_f32 v73, v73, v%d, v%d" % (S0 + r, S0 + r + 1))
        A("v_max_f32 v73, v73, v%d" % (S0 + 15))
        A("v_mov_b32 v74, v73")
        A("s_nop 1")
        A("v_permlane32_swap_b32 v73, v74")
        A("s_nop 1")
        A("v_max3_f32 v73, v73, v74, v72")
        A("v_sub_f32 v74, v72, v73")
        A("v_exp_f32 v74, v74")
        A("v_mov_b32 v72, v73")
        for r in range(16):
            A("v_sub_f32 v%d, v%d, v73" % (S0 + r, S0 + r))
        for r in range(16):
            A("v_exp_f32 v%d, v%d" % (S0 + r, S0 + r))
        for r in range(16):
            A("v_mul_f32 v%d, v%d, v74" % (O + r, O + r))
        for p in range(8):
            A("v_cvt_pk_bf16_f32 v%d, v%d, v%d" % (P0 + p, S0 + 2 * p, S0 + 2 * p + 1))
        A("s_waitcnt lgkmcnt(0)")
        A("s_nop 1")
        mfma(O, VF0, P0, O)
        mfma(O, VF0 + 4, P0 + 4, O)
        nops(16)
    A("s_add_u32 s67, s67, 16384")
    A("s_and_b32 s67, s67, 0xffff")
    A("s_add_u32 s66, s66, 1")
    A("s_cmp_lt_u32 s66, 16")
    A("s_cbranch_scc1 %s" % L("loop"))
    A("v_mov_b32 v6, v%d" % (O + 12))
    A("v_mov_b32 v7, v%d" % (O + 12))
    A("s_nop 1")
    A("v_permlane32_swap_b32 v6, v7")
    A.label(L("epi"))
    A("s_nop 1")
    A("v_rcp_f32 v7, v7")
    A("s_nop 0")
    for r in range(16):
        A("v_mul_f32 v%d, v%d, v7" % (O + r, O + r))
    for p in range(8):
        A("v_cvt_pk_bf16_f32 v%d, v%d, v%d" % (64 + p, O + 2 * p, O + 2 * p + 1))
    A("s_lshl_b32 s60, s60, 5")
    A("s_lshl_b32 s61, s41, 1")
    A("s_add_u32 s60, s60, s61")
    A("s_lshl_b32 s60, s60, 10")
    A("buffer_store_dwordx4 %s, v3, s[56:59], s60 offen" % vr(64, 4))
    A("buffer_store_dwordx4 %s, v3, s[56:59], s60 offen offset:1024" % vr(68, 4))
    stamp_flush()
    kernel_end(name)
    kernel_desc(name, 128)
    return (name, 256, 256, 131072 + 64)

def gen_skgemm(kind):
    name = "wo_kernel" if kind == "wo" else "mlp2_kernel"
    KS = 32 if kind == "wo" else 112
    KW = KS // 8
    kernel_begin(name, 224)
    A("v_lshrrev_b32 v1, 6, v0")
    A("v_and_b32 v2, 63, v0")
    A("v_readfirstlane_b32 s40, v1")
    A("s_and_b32 s41, s2, 31")
    A("s_lshr_b32 s42, s2, 5")
    A("v_lshlrev_b32 v3, 4, v2")
    A("s_waitcnt lgkmcnt(0)")
    if kind == "wo":
        srd(44, P_WS, O_OFF, O_SZ)
        srd(48, P_WS, WO_OFF, WO_SZ)
        srd(52, P_X, 0, X_SZ)
        srd(56, P_WS, MOD_OFF + 896 * 4, 1792)
        srd(60, P_WS, X2_OFF, X_SZ)
    else:
        srd(44, P_WS, H1_OFF, H1_SZ)
        srd(48, P_WS, W2_OFF, W2_SZ)
        srd(52, P_WS, X2_OFF, X_SZ)
        srd(56, P_WS, MOD_OFF + 2240 * 4, 1792)
        srd(60, P_OUT, 0, X_SZ)
    A("s_mul_i32 s64, s40, %d" % (KW * 1024))
    A("s_mul_i32 s65, s41, %d" % (2 * KS * 1024))
    A("s_add_u32 s65, s65, s64")
    A("s_add_u32 s66, s65, %d" % (KS * 1024))
    A("s_mul_i32 s67, s42, %d" % (2 * KS * 1024))
    A("s_add_u32 s67, s67, s64")
    A("s_add_u32 s68, s67, %d" % (KS * 1024))
    NB = min(KW, int(os.environ.get('NB', '8')))
    FB = 80
    ACC = 8
    def ld(s):
        b = FB + 16 * (s % NB)
        A("buffer_load_dwordx4 %s, v3, s[44:47], s65 offen offset:%d" % (vr(b, 4), 1024 * (s & 3)))
        A("buffer_load_dwordx4 %s, v3, s[44:47], s66 offen offset:%d" % (vr(b + 4, 4), 1024 * (s & 3)))
        A("buffer_load_dwordx4 %s, v3, s[48:51], s67 offen offset:%d" % (vr(b + 8, 4), 1024 * (s & 3)))
        A("buffer_load_dwordx4 %s, v3, s[48:51], s68 offen offset:%d" % (vr(b + 12, 4), 1024 * (s & 3)))
        if (s & 3) == 3:
            for r in (65, 66, 67, 68):
                A("s_add_u32 s%d, s%d, 4096" % (r, r))
    stamp()
    for s in range(NB):
        ld(s)
    stamp()
    issued = NB
    for s in range(KW):
        A("s_waitcnt vmcnt(%d)" % (4 * (issued - s - 1)))
        b = FB + 16 * (s % NB)
        for T in range(2):
            for C in range(2):
                acc = vr(ACC + 16 * (2 * T + C), 16)
                c = "0" if s == 0 else acc
                A("v_mfma_f32_32x32x16_bf16 %s, %s, %s, %s" % (acc, vr(b + 8 + 4 * C, 4), vr(b + 4 * T, 4), c))
        if issued < KW:
            ld(issued)
            issued += 1
    stamp()
    nops(16)
    A("v_and_b32 v4, 31, v2")
    A("v_mul_u32_u24 v4, 272, v4")
    A("v_lshrrev_b32 v5, 5, v2")
    A("v_lshl_add_u32 v4, v5, 4, v4")
    A("s_mul_i32 s69, s40, %d" % (64 * 272))
    A("v_add_u32 v4, s69, v4")
    for T in range(2):
        for C in range(2):
            for q in range(4):
                A("ds_write_b128 v4, %s offset:%d" % (vr(ACC + 16 * (2 * T + C) + 4 * q, 4), T * 32 * 272 + C * 128 + q * 32))
    A("v_lshrrev_b32 v5, 3, v0")
    A("v_and_b32 v6, 7, v0")
    A("s_lshl_b32 s69, s41, 6")
    A("v_add_u32 v7, s69, v5")
    A("v_mul_u32_u24 v7, 896, v7")
    A("v_lshl_add_u32 v7, v6, 4, v7")
    A("s_lshl_b32 s70, s42, 7")
    A("buffer_load_dwordx4 v[72:75], v7, s[52:55], s70 offen")
    A("v_lshlrev_b32 v76, 5, v6")
    A("s_lshl_b32 s71, s42, 8")
    A("buffer_load_dwordx4 v[80:83], v76, s[56:59], s71 offen")
    A("buffer_load_dwordx4 v[84:87], v76, s[56:59], s71 offen offset:16")
    A("v_mul_u32_u24 v4, 272, v5")
    A("v_lshl_add_u32 v4, v6, 5, v4")
    A("s_waitcnt lgkmcnt(0)")
    stamp()
    A("s_barrier")
    stamp()
    for w in range(8):
        if w * 64 * 272 + 16 < 65536 - 16:
            A("ds_read_b128 %s, v4 offset:%d" % (vr(88 + 8 * w, 4), w * 64 * 272))
            A("ds_read_b128 %s, v4 offset:%d" % (vr(92 + 8 * w, 4), w * 64 * 272 + 16))
        else:
            if w == 4:
                A("v_add_u32 v4, %d, v4" % (4 * 64 * 272))
            A("ds_read_b128 %s, v4 offset:%d" % (vr(88 + 8 * w, 4), (w - 4) * 64 * 272))
            A("ds_read_b128 %s, v4 offset:%d" % (vr(92 + 8 * w, 4), (w - 4) * 64 * 272 + 16))
    A("s_waitcnt lgkmcnt(0)")
    for w in range(1, 8):
        for j in range(8):
            A("v_add_f32 v%d, v%d, v%d" % (88 + j, 88 + j, 88 + 8 * w + j))
    A("s_waitcnt vmcnt(0)")
    for p in range(4):
        A("v_lshlrev_b32 v%d, 16, v%d" % (100 + 2 * p, 72 + p))
        A("v_and_b32 v%d, 0xffff0000, v%d" % (101 + 2 * p, 72 + p))
    for j in range(8):
        A("v_fmac_f32 v%d, v%d, v%d" % (100 + j, 88 + j, 80 + j))
    for p in range(4):
        A("v_cvt_pk_bf16_f32 v%d, v%d, v%d" % (108 + p, 100 + 2 * p, 101 + 2 * p))
    A("buffer_store_dwordx4 v[108:111], v7, s[60:63], s70 offen")
    stamp_flush()
    kernel_end(name)
    kernel_desc(name, max(FB + 16 * NB, 160))
    return (name, 224, 512, 8 * 64 * 272)

def gen_nop():
    name = "nop_kernel"
    kernel_begin(name, 1)
    kernel_end(name)
    kernel_desc(name, 8)
    return (name, 1, 64, 0)

def main():
    launches = []
    nn = int(os.environ.get("NOPS", "0"))
    if nn:
        l = gen_nop()
        launches += [l] * nn
    launches.append(gen_prep())
    launches.append(gen_lngemm("qkv"))
    launches.append(gen_attn())
    launches.append(gen_skgemm("wo"))
    launches.append(gen_lngemm("mlp1"))
    launches.append(gen_skgemm("mlp2"))
    hdr = open("cdna_kernels/%s.s.ref" % NAME).read().split("\n")
    out = []
    for l in hdr:
        if l.startswith("; @launch") or l.startswith("; Override"):
            continue
        if not l.startswith(";"):
            break
        out.append(l)
    only = sys.argv[2] if len(sys.argv) > 2 else None
    for (n, g, b, lds) in launches:
        out.append("; @launch kernel=%s grid=(%d,1,1) block=(%d,1,1) lds=%d" % (n, g, b, lds))
        if os.environ.get("DUP", "") and os.environ["DUP"] in n:
            out.append("; @launch kernel=%s grid=(%d,1,1) block=(%d,1,1) lds=%d" % (n, g, b, lds))
    out.append('.amdgcn_target "amdgcn-amd-amdhsa--gfx950"')
    out.append(".text")
    out += A.lines
    out.append('.section .rodata,"a"')
    for k in KDS:
        out.append(".p2align 6")
        out.append(k)
    open(sys.argv[1], "w").write("\n".join(out) + "\n")

if __name__ == "__main__":
    main()
```

```python
import sys

NAME = "adaLN_cond__softmax_full_mha__dense_activation_silu__prompt"

def al(x, a=65536): return (x + a - 1) // a * a
MOD_OFF = 0;                 MOD_SZ = 2688 * 4
WQKV_OFF = al(MOD_OFF + MOD_SZ); WQKV_SZ = 48 * 28 * 1024
WO_OFF = al(WQKV_OFF + WQKV_SZ); WO_SZ = 14 * 32 * 1024
W1_OFF = al(WO_OFF + WO_SZ);  W1_SZ = 56 * 28 * 1024
W2_OFF = al(W1_OFF + W1_SZ);  W2_SZ = 14 * 112 * 1024
Q_OFF = al(W2_OFF + W2_SZ);   QKV_SZ = 16 * 64 * 2 * 1024
K_OFF = Q_OFF + QKV_SZ
V_OFF = K_OFF + QKV_SZ
O_OFF = V_OFF + QKV_SZ;       O_SZ = 64 * 32 * 1024
X2_OFF = al(O_OFF + O_SZ);    X_SZ = 2048 * 448 * 2
H1_OFF = al(X2_OFF + X_SZ);   H1_SZ = 64 * 112 * 1024
WS_END = H1_OFF + H1_SZ

import os
STF = os.environ.get("STF", "sc1")
class Asm:
    def __init__(self):
        self.lines = []
        self.uid = 0
    def __call__(self, s):
        for l in s.strip().split("\n"):
            l = l.strip()
            if l.endswith("#plain"):
                l = l[:-6].strip()
            elif STF and l.startswith("buffer_store_dwordx4"):
                l = l + " " + STF
            self.lines.append("    " + l)
    def label(self, l):
        self.lines.append(l + ":")
    def new(self, p="L"):
        self.uid += 1
        return "%s_%d" % (p, self.uid)
    def raw(self, s):
        self.lines.append(s)

A = Asm()

def vr(b, n=1):
    return "v%d" % b if n == 1 else "v[%d:%d]" % (b, b + n - 1)
def sr(b, n=1):
    return "s%d" % b if n == 1 else "s[%d:%d]" % (b, b + n - 1)

P_X, P_WQKV, P_WO, P_BX, P_W1, P_W2, P_C, P_WMOD = 16, 18, 20, 22, 24, 26, 28, 30
P_OUT, P_DBG, P_WS = 32, 34, 36

def kernel_begin(name, nwg):
    NST[0] = 0
    KIDX[0] = len(KDS)
    A.raw(".globl %s" % name)
    A.raw(".p2align 8")
    A.raw(".type %s,@function" % name)
    A.label(name)
    A("s_cmp_ge_u32 s2, %d" % nwg)
    A("s_cbranch_scc1 %s_end" % name)
    A("s_load_dwordx16 s[16:31], s[0:1], 0")
    A("s_load_dwordx4 s[32:35], s[0:1], 64")
    A("s_load_dwordx2 s[36:37], s[0:1], 80")
    if STAMP:
        A("s_memrealtime s[96:97]")
        A("v_mov_b32 v255, 0")

def kernel_end(name):
    A.label(name + "_end")
    A("s_endpgm")

KDS = []
def kernel_desc(name, vgpr, sgpr=100):
    if STAMP: vgpr = 256
    vg = (vgpr + 7) // 8 * 8
    KDS.append(""".amdhsa_kernel %s
  .amdhsa_next_free_vgpr %d
  .amdhsa_next_free_sgpr %d
  .amdhsa_accum_offset %d
  .amdhsa_group_segment_fixed_size 0
  .amdhsa_kernarg_size 88
  .amdhsa_user_sgpr_count 2
  .amdhsa_user_sgpr_kernarg_segment_ptr 1
  .amdhsa_system_sgpr_workgroup_id_x 1
.end_amdhsa_kernel""" % (name, vg, sgpr, vg))

def srd(d, p, off, size):
    if off:
        A("s_add_u32 s%d, s%d, 0x%x" % (d, p, off))
        A("s_addc_u32 s%d, s%d, 0" % (d + 1, p + 1))
    else:
        A("s_mov_b32 s%d, s%d" % (d, p))
        A("s_mov_b32 s%d, s%d" % (d + 1, p + 1))
    A("s_mov_b32 s%d, 0x%x" % (d + 2, size))
    A("s_mov_b32 s%d, 0x20000" % (d + 3))

import os
STAMP = 1 if os.environ.get("STAMP", "") not in ("", "0") else 0
STAMP_OFF = 48 << 20
KIDX = [0]
NST = [0]
def stamp():
    if not STAMP: return
    i = NST[0]
    if i >= 13: return
    NST[0] += 1
    A("s_memtime s[92:93]")
    A("s_waitcnt lgkmcnt(0)")
    A("v_writelane_b32 v255, s92, %d" % i)
def stamp_flush(tmpv=250):
    if not STAMP: return
    stamp()
    srd(72, P_WS, STAMP_OFF + KIDX[0] * 256 * 16 * 64, 256 * 16 * 64)
    A("s_memrealtime s[92:93]")
    A("s_waitcnt lgkmcnt(0)")
    A("v_writelane_b32 v255, s96, 14")
    A("v_writelane_b32 v255, s92, 15")
    A("v_lshrrev_b32 v%d, 6, v0" % tmpv)
    A("s_lshl_b32 s94, s2, 4")
    A("v_add_u32 v%d, s94, v%d" % (tmpv, tmpv))
    A("v_lshlrev_b32 v%d, 6, v%d" % (tmpv, tmpv))
    A("v_and_b32 v%d, 63, v0" % (tmpv + 1))
    A("v_lshl_add_u32 v%d, v%d, 2, v%d" % (tmpv, tmpv + 1, tmpv))
    A("s_mov_b64 exec, 0xffff")
    A("buffer_store_dword v255, v%d, s[72:75], 0 offen" % tmpv)
    A("s_waitcnt vmcnt(0)")
    A("s_mov_b64 exec, -1")

def nops(n):
    while n > 0:
        k = min(n, 16)
        A("s_nop %d" % (k - 1))
        n -= k

def gen_prep():
    name = "prep_kernel"
    NW_MOD, NW_QKV, NW_WO, NW_W1, NW_W2 = 21, 48, (56 if os.environ.get('SIDE', '0') == '0' else 16), 0, 0
    b1 = NW_MOD; b2 = b1 + NW_QKV; b3 = b2 + NW_WO; b4 = b3 + NW_W1; b5 = b4 + NW_W2
    kernel_begin(name, b5)
    A("v_and_b32 v1, 7, v0")
    A("v_bfe_u32 v2, v0, 3, 1")
    A("v_lshrrev_b32 v3, 4, v0")
    A("s_waitcnt lgkmcnt(0)")
    A("s_cmp_lt_u32 s2, %d" % b1)
    A("s_cbranch_scc1 prep_mod")
    A("s_mov_b32 s60, 0x05040100")
    A("s_mov_b32 s61, 0x07060302")
    A("s_cmp_lt_u32 s2, %d" % b2)
    A("s_cbranch_scc1 prep_qkv")
    A("v_lshrrev_b32 v40, 6, v0")
    A("v_and_b32 v41, 63, v0")
    A("v_readfirstlane_b32 s40, v40")
    A("v_lshlrev_b32 v42, 4, v41")
    A("s_sub_u32 s72, s2, %d" % b2)
    A("s_lshl_b32 s72, s72, 3")
    A("s_add_u32 s72, s72, s40")
    if os.environ.get('SIDE', '0') == '1':
        A("s_add_u32 s72, s72, 896")
    PL = lambda s: "prep_%s" % s
    if os.environ.get('SIDE', '0') == '1':
        A("s_lshl_b32 s92, s40, 12")
        emit_rl_decode(PL, 72, 48, 41)
        emit_rl_body(48, 41, 42, 92, plain=True)
    else:
        A("s_lshl_b32 s92, s40, 13")
        emit_rl2(PL, 72, 48, 41, 42, 92)
    if os.environ.get("CPF", "1") == "1":
        A("s_cmp_ge_u32 s2, %d" % (b2 + 16))
        A("s_cbranch_scc1 prep_nopf")
        A("s_getpc_b64 s[94:95]")
        A.label("prep_pc")
        A("s_add_u32 s94, s94, qkv_kernel-prep_pc")
        A("s_addc_u32 s95, s95, 0")
        A("v_lshlrev_b32 v43, 6, v0")
        A("global_load_dword v44, v43, s[94:95]")
        A("v_add_u32 v43, 0x8000, v43")
        A("v_cmp_gt_u32 vcc, (mlp2_kernel_end-qkv_kernel), v43")
        A("s_and_saveexec_b64 s[96:97], vcc")
        A("s_cbranch_execz prep_nopf")
        A("global_load_dword v45, v43, s[94:95]")
        A.label("prep_nopf")
    if os.environ.get("PF2", "0") == "1":
        A("s_mov_b64 exec, -1")
        A("s_cmp_ge_u32 s2, %d" % (b2 + 16))
        A("s_cbranch_scc1 prep_nopf2")
        srd(40, P_X, 0, X_SZ)
        A("s_sub_u32 s44, s2, %d" % b2)
        A("s_mul_i32 s44, s44, 114688")
        A("v_lshlrev_b32 v43, 4, v0")
        for i in range(14):
            A("buffer_load_dwordx4 v[48:51], v43, s[40:43], s44 offen")
            A("s_add_u32 s44, s44, 8192")
        srd(40, P_WS, 0, WS_END)
        A("v_lshlrev_b32 v43, 16, v0")
        A("buffer_load_dword v52, v43, s[40:43], 0 offen")
        srd(44, P_OUT, 0, X_SZ)
        A("buffer_load_dword v53, v43, s[44:47], 0 offen")
        A.label("prep_nopf2")
    stamp_flush()
    NST[0] = 0
    A("s_endpgm")
    def common(RS, nunits):
        A("s_mov_b32 s50, %d" % RS)
        A("s_mov_b32 s51, %d" % (2 * RS))
        A("s_mov_b32 s52, %d" % (3 * RS))
        if nunits < 512:
            A("v_cmp_gt_u32 vcc, %d, v0" % nunits)
            A("s_and_saveexec_b64 s[54:55], vcc")
            A("s_cbranch_execz %s_end" % name)
        for grp, vo in ((0, 4), (1, 5)):
            for i in range(4):
                so = "0" if i == 0 else "s%d" % (49 + i)
                A("buffer_load_dwordx2 %s, v%d, s[40:43], %s offen" % (vr(8 + 2 * (grp * 4 + i), 2), vo, so))
        A("v_lshlrev_b32 v6, 6, v0")
        A("s_waitcnt vmcnt(0)")
        for i in range(4):
            sel = "s61" if (i & 1) else "s60"
            for p in range(4):
                A("v_perm_b32 v%d, v%d, v%d, %s" % (24 + 4 * i + p, 8 + 2 * (2 * p + 1) + (i >> 1), 8 + 2 * (2 * p) + (i >> 1), sel))
        for i in range(4):
            A("ds_write_b128 v6, %s offset:%d" % (vr(24 + 4 * i, 4), 16 * i))
        A("v_and_b32 v7, 63, v0")
        A("v_lshrrev_b32 v6, 6, v0")
        A("v_lshlrev_b32 v6, 12, v6")
        A("v_lshl_add_u32 v6, v7, 4, v6")
        A("s_waitcnt lgkmcnt(0)")
        for i in range(4):
            A("ds_read_b128 %s, v6 offset:%d" % (vr(24 + 4 * i, 4), 1024 * i))
        for i in range(4):
            A("s_waitcnt lgkmcnt(%d)" % (3 - i))
            A("buffer_store_dwordx4 %s, v6, s[44:47], s48 offen offset:%d" % (vr(24 + 4 * i, 4), 1024 * i))
        n0 = NST[0]
        stamp_flush()
        NST[0] = n0
        A("s_endpgm")

    A.label("prep_qkv")
    RS = 2688
    A("s_sub_u32 s56, s2, %d" % b1)
    A("s_mul_i32 s57, s56, 171")
    A("s_lshr_b32 s57, s57, 9")
    A("s_mul_i32 s58, s57, 3")
    A("s_sub_u32 s58, s56, s58")
    A("s_mul_i32 s58, s58, 896")
    A("s_mul_i32 s57, s57, 56")
    A("s_add_u32 s58, s58, s57")
    srd(40, P_WQKV, 0, 448 * 1344 * 2)
    srd(44, P_WS, WQKV_OFF, WQKV_SZ)
    A("s_mul_i32 s48, s56, %d" % (28 * 1024))
    A("v_lshlrev_b32 v4, 4, v3")
    A("v_lshl_add_u32 v4, v2, 3, v4")
    A("s_mov_b32 s59, %d" % RS)
    A("v_mul_lo_u32 v4, v4, s59")
    A("v_lshl_add_u32 v4, v1, 3, v4")
    A("v_add_u32 v4, s58, v4")
    A("v_add_u32 v5, %d, v4" % (4 * RS))
    A("v_mov_b32 v7, 0x7f000000")
    A("v_cmp_eq_u32 vcc, 7, v1")
    A("s_nop 1")
    A("v_cndmask_b32 v4, v4, v7, vcc")
    A("v_cndmask_b32 v5, v5, v7, vcc")
    common(RS, 448)

    A.label("prep_mod")
    stamp()
    srd(40, P_WMOD, 0, 448 * 2688 * 2)
    srd(44, P_C, 0, 896)
    srd(48, P_WS, MOD_OFF, MOD_SZ)
    A("v_lshrrev_b32 v1, 6, v0")
    A("v_and_b32 v2, 63, v0")
    A("v_readfirstlane_b32 s56, v1")
    A("s_nop 3")
    A("s_mul_i32 s57, s56, 112")
    A("v_lshlrev_b32 v3, 1, v2")
    A("buffer_load_ushort v4, v3, s[44:47], s57 offen")
    A("s_lshl_b32 s58, s2, 8")
    A("v_lshlrev_b32 v5, 2, v2")
    A("v_add_u32 v5, s58, v5")
    A("s_mul_i32 s59, s56, %d" % (56 * 5376))
    for i in range(56):
        A("buffer_load_dword v%d, v5, s[40:43], s59 offen" % (16 + i))
        A("s_add_u32 s59, s59, 5376")
    stamp()
    A("s_waitcnt vmcnt(56)")
    stamp()
    A("v_lshlrev_b32 v4, 16, v4")
    A("v_mul_f32 v6, 0xbfb8aa3b, v4")
    A("v_exp_f32 v6, v6")
    A("s_nop 0")
    A("v_add_f32 v6, 1.0, v6")
    A("v_rcp_f32 v6, v6")
    A("s_nop 0")
    A("v_mul_f32 v6, v4, v6")
    A("v_mov_b32 v8, 0")
    A("v_mov_b32 v9, 0")
    for i in range(56):
        A("v_readlane_b32 s60, v6, %d" % i)
        A("s_waitcnt vmcnt(%d)" % (55 - i))
        A("v_lshlrev_b32 v10, 16, v%d" % (16 + i))
        A("v_and_b32 v11, 0xffff0000, v%d" % (16 + i))
        A("v_fmac_f32 v8, s60, v10")
        A("v_fmac_f32 v9, s60, v11")
    stamp()
    A("v_lshlrev_b32 v12, 3, v0")
    A("ds_write_b64 v12, v[8:9]")
    A("s_waitcnt lgkmcnt(0)")
    A("s_barrier")
    A("s_cmp_lg_u32 s56, 0")
    A("s_cbranch_scc1 %s_end" % name)
    for w in range(8):
        A("ds_read_b64 %s, v12 offset:%d" % (vr(16 + 2 * w, 2), 512 * w))
    A("s_waitcnt lgkmcnt(0)")
    for w in range(1, 8):
        A("v_add_f32 v16, v16, v%d" % (16 + 2 * w))
        A("v_add_f32 v17, v17, v%d" % (17 + 2 * w))
    A("s_lshl_b32 s58, s2, 7")
    A("v_lshlrev_b32 v3, 1, v2")
    A("v_add_u32 v3, s58, v3")
    A("v_subrev_u32 v10, 448, v3")
    A("v_cmp_gt_u32 vcc, 448, v10")
    A("s_nop 1")
    A("s_mov_b64 s[62:63], vcc")
    A("v_subrev_u32 v11, 1792, v3")
    A("v_cmp_gt_u32 vcc, 448, v11")
    A("s_nop 1")
    A("s_or_b64 vcc, vcc, s[62:63]")
    A("v_add_f32 v18, 1.0, v16")
    A("v_add_f32 v19, 1.0, v17")
    A("s_nop 1")
    A("v_cndmask_b32 v16, v16, v18, vcc")
    A("v_cndmask_b32 v17, v17, v19, vcc")
    A("v_lshlrev_b32 v3, 2, v3")
    A("buffer_store_dwordx2 v[16:17], v3, s[48:51], 0 offen")
    stamp_flush()
    kernel_end(name)
    kernel_desc(name, 128)
    return (name, b5, 512, 65536)


def emit_rl2(L, su, RL, lane, lane16, scr):
    A("s_cmp_lt_u32 s%d, 56" % su)
    A("s_cbranch_scc1 %s" % L("r2_wo"))
    A("s_cmp_lt_u32 s%d, 252" % su)
    A("s_cbranch_scc1 %s" % L("r2_w1"))
    A("s_sub_u32 s74, s%d, 252" % su)
    A("s_mul_i32 s75, s74, 2341")
    A("s_lshr_b32 s75, s75, 16")
    A("s_mul_i32 s76, s75, 28")
    A("s_sub_u32 s76, s74, s76")
    srd(84, P_W2, 0, 1792 * 448 * 2)
    A("s_mov_b32 s77, 896")
    A("s_mov_b32 s78, 32")
    A("s_mov_b32 s79, 4")
    A("s_mov_b32 s80, 112")
    A("s_mov_b32 s81, 0x%x" % W2_OFF)
    A("s_mov_b32 s82, 0")
    A("s_branch %s" % L("r2_go"))
    A.label(L("r2_w1"))
    A("s_sub_u32 s74, s%d, 56" % su)
    A("s_mul_i32 s75, s74, 9363")
    A("s_lshr_b32 s75, s75, 16")
    A("s_mul_i32 s76, s75, 7")
    A("s_sub_u32 s76, s74, s76")
    srd(84, P_W1, 0, 448 * 1792 * 2)
    A("s_mov_b32 s77, 3584")
    A("s_mov_b32 s78, 32")
    A("s_mov_b32 s79, 8")
    A("s_mov_b32 s80, 28")
    A("s_mov_b32 s81, 0x%x" % W1_OFF)
    A("s_mov_b32 s82, 0")
    A("s_branch %s" % L("r2_go"))
    A.label(L("r2_wo"))
    A("s_lshr_b32 s75, s%d, 3" % su)
    A("s_and_b32 s76, s%d, 7" % su)
    srd(84, P_WO, 0, 448 * 448 * 2)
    A("s_mov_b32 s77, 896")
    A("s_mov_b32 s78, 28")
    A("s_mov_b32 s79, 4")
    A("s_mov_b32 s80, 32")
    A("s_mov_b32 s81, 0x%x" % WO_OFF)
    A("s_mov_b32 s82, 1")
    A.label(L("r2_go"))
    srd(88, P_WS, 0, W2_OFF + W2_SZ)
    A("s_lshl_b32 s83, s75, 1")
    A("s_mul_i32 s83, s83, s80")
    A("s_lshl_b32 s74, s76, 2")
    A("s_add_u32 s83, s83, s74")
    A("s_lshl_b32 s83, s83, 10")
    A("s_add_u32 s81, s81, s83")
    A("s_lshl_b32 s80, s80, 10")
    A("s_add_u32 s80, s81, s80")
    A("v_and_b32 v%d, 7, v%d" % (RL, lane))
    A("v_bfe_u32 v%d, v%d, 3, 1" % (RL + 1, lane))
    A("v_lshrrev_b32 v%d, 4, v%d" % (RL + 2, lane))
    A("v_add_u32 v%d, s74, v%d" % (RL + 3, RL + 2))
    A("v_lshrrev_b32 v%d, 1, v%d" % (RL + 4, RL + 3))
    A("v_mul_lo_u32 v%d, v%d, s78" % (RL + 4, RL + 4))
    A("v_and_b32 v%d, 1, v%d" % (RL + 5, RL + 3))
    A("v_lshl_add_u32 v%d, v%d, 4, v%d" % (RL + 4, RL + 5, RL + 4))
    A("v_mul_lo_u32 v%d, v%d, s79" % (RL + 6, RL + 1))
    A("v_add_u32 v%d, v%d, v%d" % (RL + 4, RL + 4, RL + 6))
    A("v_mul_lo_u32 v%d, v%d, s77" % (RL + 4, RL + 4))
    A("v_lshl_add_u32 v%d, v%d, 4, v%d" % (RL + 4, RL, RL + 4))
    A("s_lshl_b32 s83, s75, 7")
    A("v_add_u32 v%d, s83, v%d" % (RL + 4, RL + 4))
    A("s_sub_u32 s83, 12, s79")
    A("s_mul_i32 s83, s83, s77")
    A("v_add_u32 v%d, s83, v%d" % (RL + 6, RL + 4))
    A("v_and_b32 v%d, v%d, v%d" % (RL + 5, RL + 5, RL + 1))
    A("v_and_b32 v%d, s82, v%d" % (RL + 5, RL + 5))
    A("v_mov_b32 v%d, 0x7f000000" % (RL + 7))
    A("v_cmp_eq_u32 vcc, 1, v%d" % (RL + 5))
    A("s_lshl_b32 s78, s77, 1")
    A("s_add_u32 s79, s78, s77")
    A("v_cndmask_b32 v%d, v%d, v%d, vcc" % (RL + 6, RL + 6, RL + 7))
    R0 = RL + 8
    for grp, vo in ((0, RL + 4), (1, RL + 6)):
        for i, so in enumerate(("0", "s77", "s78", "s79")):
            A("buffer_load_dwordx4 %s, v%d, s[84:87], %s offen" % (vr(R0 + 4 * (grp * 4 + i), 4), vo, so))
    A("s_mov_b32 s74, 0x05040100")
    A("s_mov_b32 s75, 0x07060302")
    A("v_lshrrev_b32 v%d, 2, v%d" % (RL + 3, RL))
    A("v_lshlrev_b32 v%d, 12, v%d" % (RL + 3, RL + 3))
    A("v_lshl_add_u32 v%d, v%d, 10, v%d" % (RL + 3, RL + 2, RL + 3))
    A("v_lshl_add_u32 v%d, v%d, 9, v%d" % (RL + 3, RL + 1, RL + 3))
    A("v_and_b32 v%d, 3, v%d" % (RL + 5, RL))
    A("v_lshl_add_u32 v%d, v%d, 7, v%d" % (RL + 3, RL + 5, RL + 3))
    A("v_add_u32 v%d, s%d, v%d" % (RL + 3, scr, RL + 3))
    A("v_add_u32 v%d, s%d, v%d" % (RL + 1, scr, lane16))
    O0 = R0 + 32
    A("s_waitcnt vmcnt(0)")
    for i in range(8):
        sel = "s75" if (i & 1) else "s74"
        for p in range(4):
            A("v_perm_b32 v%d, v%d, v%d, %s" % (O0 + 4 * i + p, R0 + 4 * (2 * p + 1) + (i >> 1), R0 + 4 * (2 * p) + (i >> 1), sel))
    for i in range(8):
        A("ds_write_b128 v%d, %s offset:%d" % (RL + 3, vr(O0 + 4 * i, 4), 16 * i))
    A("s_waitcnt lgkmcnt(0)")
    for q in range(8):
        A("ds_read_b128 %s, v%d offset:%d" % (vr(O0 + 4 * q, 4), RL + 1, 1024 * q))
    for q in range(8):
        A("s_waitcnt lgkmcnt(%d)" % (7 - q))
        A("buffer_store_dwordx4 %s, v%d, s[88:91], %s offen offset:%d #plain" % (vr(O0 + 4 * q, 4), lane16, "s81" if q < 4 else "s80", 1024 * (q & 3)))


def emit_rl_decode(L, su, RL, lane):
    A("s_min_u32 s74, s%d, 895" % su)
    A("s_cmp_lt_u32 s74, 112")
    A("s_cbranch_scc1 %s" % L("rl_wo"))
    A("s_cmp_lt_u32 s74, 504")
    A("s_cbranch_scc1 %s" % L("rl_w1"))
    A("s_sub_u32 s74, s74, 504")
    A("s_mul_i32 s75, s74, 2341")
    A("s_lshr_b32 s75, s75, 16")
    A("s_mul_i32 s76, s75, 28")
    A("s_sub_u32 s76, s74, s76")
    srd(84, P_W2, 0, 1792 * 448 * 2)
    A("s_mov_b32 s77, 896")
    A("s_mov_b32 s78, 32")
    A("s_mov_b32 s79, 4")
    A("s_mul_i32 s80, s75, 112")
    A("s_mov_b32 s81, 0x%x" % W2_OFF)
    A("s_mov_b32 s82, 0")
    A("s_branch %s" % L("rl_go"))
    A.label(L("rl_w1"))
    A("s_sub_u32 s74, s74, 112")
    A("s_mul_i32 s75, s74, 9363")
    A("s_lshr_b32 s75, s75, 16")
    A("s_mul_i32 s76, s75, 7")
    A("s_sub_u32 s76, s74, s76")
    srd(84, P_W1, 0, 448 * 1792 * 2)
    A("s_mov_b32 s77, 3584")
    A("s_mov_b32 s78, 32")
    A("s_mov_b32 s79, 8")
    A("s_mul_i32 s80, s75, 28")
    A("s_mov_b32 s81, 0x%x" % W1_OFF)
    A("s_mov_b32 s82, 0")
    A("s_branch %s" % L("rl_go"))
    A.label(L("rl_wo"))
    A("s_lshr_b32 s75, s74, 3")
    A("s_and_b32 s76, s74, 7")
    srd(84, P_WO, 0, 448 * 448 * 2)
    A("s_mov_b32 s77, 896")
    A("s_mov_b32 s78, 28")
    A("s_mov_b32 s79, 4")
    A("s_lshl_b32 s80, s75, 5")
    A("s_mov_b32 s81, 0x%x" % WO_OFF)
    A("s_mov_b32 s82, 1")
    A.label(L("rl_go"))
    srd(88, P_WS, 0, W2_OFF + W2_SZ)
    A("s_cmp_ge_u32 s%d, 896" % su)
    A("s_cselect_b32 s86, 0, s86")
    A("s_cselect_b32 s90, 0, s90")
    A("s_lshl_b32 s83, s76, 2")
    A("s_add_u32 s80, s80, s83")
    A("s_lshl_b32 s80, s80, 10")
    A("s_add_u32 s81, s81, s80")
    A("v_and_b32 v%d, 7, v%d" % (RL, lane))
    A("v_bfe_u32 v%d, v%d, 3, 1" % (RL + 1, lane))
    A("v_lshrrev_b32 v%d, 4, v%d" % (RL + 2, lane))
    A("v_add_u32 v%d, s83, v%d" % (RL + 2, RL + 2))
    A("v_lshrrev_b32 v%d, 1, v%d" % (RL + 3, RL + 2))
    A("v_mul_lo_u32 v%d, v%d, s78" % (RL + 3, RL + 3))
    A("v_and_b32 v%d, 1, v%d" % (RL + 4, RL + 2))
    A("v_lshl_add_u32 v%d, v%d, 4, v%d" % (RL + 3, RL + 4, RL + 3))
    A("v_mul_lo_u32 v%d, v%d, s79" % (RL + 5, RL + 1))
    A("v_add_u32 v%d, v%d, v%d" % (RL + 3, RL + 3, RL + 5))
    A("v_mul_lo_u32 v%d, v%d, s77" % (RL + 3, RL + 3))
    A("v_lshl_add_u32 v%d, v%d, 3, v%d" % (RL + 3, RL, RL + 3))
    A("s_lshl_b32 s83, s75, 6")
    A("v_add_u32 v%d, s83, v%d" % (RL + 3, RL + 3))
    A("s_sub_u32 s83, 12, s79")
    A("s_mul_i32 s83, s83, s77")
    A("v_add_u32 v%d, s83, v%d" % (RL + 5, RL + 3))
    A("v_and_b32 v%d, v%d, v%d" % (RL + 4, RL + 4, RL + 1))
    A("v_and_b32 v%d, s82, v%d" % (RL + 4, RL + 4))
    A("v_mov_b32 v%d, 0x7f000000" % (RL + 6))
    A("v_cmp_eq_u32 vcc, 1, v%d" % (RL + 4))
    A("s_lshl_b32 s78, s77, 1")
    A("s_add_u32 s79, s78, s77")
    A("v_cndmask_b32 v%d, v%d, v%d, vcc" % (RL + 5, RL + 5, RL + 6))

def emit_rl_body(RL, lane, lane16, scratch_sreg, plain=False):
    for grp, vo in ((0, RL + 3), (1, RL + 5)):
        for i, so in enumerate(("0", "s77", "s78", "s79")):
            A("buffer_load_dwordx2 %s, v%d, s[84:87], %s offen" % (vr(RL + 8 + 2 * (grp * 4 + i), 2), vo, so))
    A("s_mov_b32 s74, 0x05040100")
    A("s_mov_b32 s75, 0x07060302")
    A("v_lshlrev_b32 v%d, 6, v%d" % (RL, lane))
    A("v_add_u32 v%d, s%d, v%d" % (RL, scratch_sreg, RL))
    A("v_add_u32 v%d, s%d, v%d" % (RL + 1, scratch_sreg, lane16))
    A("s_waitcnt vmcnt(0)")
    for i in range(4):
        sel = "s75" if (i & 1) else "s74"
        for p in range(4):
            A("v_perm_b32 v%d, v%d, v%d, %s" % (RL + 24 + 4 * i + p, RL + 8 + 2 * (2 * p + 1) + (i >> 1), RL + 8 + 2 * (2 * p) + (i >> 1), sel))
    for i in range(4):
        A("ds_write_b128 v%d, %s offset:%d" % (RL, vr(RL + 24 + 4 * i, 4), 16 * i))
    A("s_waitcnt lgkmcnt(0)")
    for i in range(4):
        A("ds_read_b128 %s, v%d offset:%d" % (vr(RL + 24 + 4 * i, 4), RL + 1, 1024 * i))
    for i in range(4):
        A("s_waitcnt lgkmcnt(%d)" % (3 - i))
        A("buffer_store_dwordx4 %s, v%d, s[88:91], s81 offen offset:%d%s" % (vr(RL + 24 + 4 * i, 4), lane16, 1024 * i, " #plain" if plain else ""))

def gen_lngemm(kind):
    name = "qkv_kernel" if kind == "qkv" else "mlp1_kernel"
    NCT = 6 if kind == "qkv" else 7
    MODL = 57344
    kernel_begin(name, 256)
    L = lambda s: "%s_%s" % (name, s)
    A("v_lshrrev_b32 v1, 6, v0")
    A("v_and_b32 v2, 63, v0")
    A("v_readfirstlane_b32 s40, v1")
    A("s_lshr_b32 s43, s2, 3")
    A("s_bfe_u32 s41, s2, 0x20001")
    A("s_lshl_b32 s41, s41, 3")
    A("s_and_b32 s42, s43, 7")
    A("s_add_u32 s41, s41, s42")
    A("s_and_b32 s42, s2, 1")
    A("s_lshl_b32 s42, s42, 2")
    A("s_lshr_b32 s43, s43, 3")
    A("s_add_u32 s42, s42, s43")
    A("v_and_b32 v3, 7, v2")
    A("v_lshrrev_b32 v4, 3, v2")
    A("s_waitcnt lgkmcnt(0)")
    stamp()
    if kind == "qkv":
        srd(44, P_X, 0, X_SZ)
        srd(48, P_WS, MOD_OFF, 3584)
        srd(52, P_WS, WQKV_OFF, WQKV_SZ)
    else:
        srd(44, P_WS, X2_OFF, X_SZ)
        srd(48, P_WS, MOD_OFF + 1344 * 4, 3584)
        srd(52, P_WS, W1_OFF, W1_SZ)
    A("s_lshl_b32 s60, s41, 6")
    A("s_lshl_b32 s61, s40, 3")
    A("s_add_u32 s60, s60, s61")
    A("v_add_u32 v5, s60, v3")
    A("v_mul_u32_u24 v5, 896, v5")
    A("v_lshl_add_u32 v5, v4, 4, v5")
    XR = 8
    for i in range(7):
        A("buffer_load_dwordx4 %s, v5, s[44:47], 0 offen offset:%d" % (vr(XR + 4 * i, 4), 128 * i))
        if os.environ.get("LAT") and i == 0:
            stamp()
            A("s_waitcnt vmcnt(0)")
            stamp()
    if os.environ.get("LAT"):
        stamp()
        A("s_waitcnt vmcnt(0)")
        stamp()
    A("v_lshlrev_b32 v6, 4, v0")
    A("buffer_load_dwordx4 v[36:39], v6, s[48:51], 0 offen")
    WR = 128
    A("v_lshlrev_b32 v7, 4, v2")
    A("s_mul_i32 s62, s42, %d" % NCT)
    A("s_add_u32 s62, s62, s40")
    A("s_mul_i32 s63, s62, %d" % (28 * 1024))
    A("s_lshr_b32 s60, s40, 2")
    A("s_mul_i32 s60, s60, 28672")
    A("s_and_b32 s61, s40, 3")
    A("s_lshl_b32 s61, s61, 7")
    A("s_add_u32 s60, s60, s61")
    A("s_barrier")
    XF = 40
    def ln_phase(withw, mode="A"):
        NPRE = int(os.environ.get("NPRE", "8"))
        PER = int(os.environ.get("PER", "18"))
        if os.environ.get("SPLIT", "0") == "1":
            NPRE, PER = (28, 1000) if mode == "A" else (0, 1000)
        wl = []
        for k in range(28):
            wl.append("buffer_load_dwordx4 %s, v7, s[52:55], s63 offen offset:%d" % (vr(WR + 4 * k, 4), 1024 * (k & 3)))
            if (k & 3) == 3:
                wl[-1] += "\ns_add_u32 s63, s63, 4096"
        if not withw: wl = []
        for k in range(min(NPRE, len(wl))):
            A(wl.pop(0))
        A("s_waitcnt vmcnt(%d)" % (NPRE if withw else 0))
        stamp()
        cnt = [0]
        def V(t):
            A(t)
            cnt[0] += 1
            if wl and cnt[0] % PER == 0:
                A(wl.pop(0))
        V("v_add_u32 v6, %d, v6" % MODL)
        V("ds_write_b128 v6, v[36:39]")
        for r in range(28):
            V("v_lshlrev_b32 v%d, 16, v%d" % (XF + 2 * r, XR + r))
            V("v_and_b32 v%d, 0xffff0000, v%d" % (XF + 2 * r + 1, XR + r))
        pr = lambda r: vr(r, 2)
        V("v_pk_add_f32 v[96:97], %s, %s" % (pr(XF), pr(XF + 2)))
        V("v_pk_add_f32 v[98:99], %s, %s" % (pr(XF + 4), pr(XF + 6)))
        for e in range(4, 28):
            a = 96 + 2 * (e & 1)
            V("v_pk_add_f32 %s, %s, %s" % (pr(a), pr(a), pr(XF + 2 * e)))
        V("v_pk_add_f32 v[96:97], v[96:97], v[98:99]")
        V("v_add_f32 v96, v96, v97")
        def xreduce(r, t1, t2):
            V("s_nop 1")
            V("v_add_f32_dpp v%d, v%d, v%d row_ror:8 row_mask:0xf bank_mask:0xf" % (t1, r, r))
            V("v_mov_b32 v%d, v%d" % (t2, t1))
            V("s_nop 1")
            V("v_permlane16_swap_b32 v%d, v%d" % (t1, t2))
            V("s_nop 1")
            V("v_add_f32 v%d, v%d, v%d" % (t1, t1, t2))
            V("v_mov_b32 v%d, v%d" % (t2, t1))
            V("s_nop 1")
            V("v_permlane32_swap_b32 v%d, v%d" % (t1, t2))
            V("s_nop 1")
            V("v_add_f32 v%d, v%d, v%d" % (r, t1, t2))
        xreduce(96, 100, 101)
        V("v_mul_f32 v96, 0x%08x, v96" % f2u(-1.0 / 448))
        V("v_mov_b32 v97, v96")
        for e in range(28):
            V("v_pk_add_f32 %s, %s, v[96:97]" % (pr(XF + 2 * e), pr(XF + 2 * e)))
        V("v_pk_mul_f32 v[98:99], %s, %s" % (pr(XF), pr(XF)))
        V("v_pk_mul_f32 v[100:101], %s, %s" % (pr(XF + 2), pr(XF + 2)))
        for e in range(2, 28):
            a = 98 + 2 * (e & 1)
            V("v_pk_fma_f32 %s, %s, %s, %s" % (pr(a), pr(XF + 2 * e), pr(XF + 2 * e), pr(a)))
        V("v_pk_add_f32 v[98:99], v[98:99], v[100:101]")
        V("v_add_f32 v97, v98, v99")
        xreduce(97, 100, 101)
        V("v_mov_b32 v98, 0x%08x" % f2u(1e-5))
        V("v_fmac_f32 v98, 0x%08x, v97" % f2u(1.0 / 448))
        V("v_rsq_f32 v98, v98")
        V("v_lshlrev_b32 v5, 5, v4")
        V("v_add_u32 v5, %d, v5" % MODL)
        V("v_lshrrev_b32 v6, 1, v4")
        V("v_lshlrev_b32 v6, 10, v6")
        V("v_and_b32 v36, 1, v4")
        V("v_lshl_add_u32 v6, v36, 9, v6")
        V("v_lshl_add_u32 v6, v3, 4, v6")
        V("v_add_u32 v6, s60, v6")
        V("v_mov_b32 v99, v98")
        if os.environ.get("SPLIT", "0") == "1" and mode == "B":
            while wl: A(wl.pop(0))
        A("s_waitcnt lgkmcnt(0)")
        stamp()
        A("s_barrier")
        stamp()
        def rdmod(i):
            b = 8 + 16 * (i & 1)
            V("ds_read_b128 %s, v5 offset:%d" % (vr(b, 4), 256 * i))
            V("ds_read_b128 %s, v5 offset:%d" % (vr(b + 4, 4), 256 * i + 16))
            V("ds_read_b128 %s, v5 offset:%d" % (vr(b + 8, 4), 1792 + 256 * i))
            V("ds_read_b128 %s, v5 offset:%d" % (vr(b + 12, 4), 1792 + 256 * i + 16))
        rdmod(0)
        for i in range(7):
            b = 8 + 16 * (i & 1)
            for j in range(4):
                V("v_pk_mul_f32 %s, %s, v[98:99]" % (pr(XF + 8 * i + 2 * j), pr(XF + 8 * i + 2 * j)))
            if i + 1 < 7:
                A("s_waitcnt lgkmcnt(1)" if i > 0 else "s_waitcnt lgkmcnt(0)")
                rdmod(i + 1)
            else:
                A("s_waitcnt lgkmcnt(0)")
            for j in range(4):
                V("v_pk_fma_f32 %s, %s, %s, %s" % (pr(XF + 8 * i + 2 * j), pr(XF + 8 * i + 2 * j), pr(b + 8 + 2 * j), pr(b + 2 * j)))
            hb = 100 + 4 * (i & 1)
            for p in range(4):
                V("v_cvt_pk_bf16_f32 v%d, v%d, v%d" % (hb + p, XF + 8 * i + 2 * p, XF + 8 * i + 2 * p + 1))
            V("ds_write_b128 v6, %s offset:%d" % (vr(hb, 4), 4096 * i))
        while wl: A(wl.pop(0))
        A("s_waitcnt lgkmcnt(0)")
        stamp()
        A("s_barrier")
        stamp()
    A("s_cmp_ge_u32 s40, %d" % NCT)
    A("s_cbranch_scc1 %s" % L("now"))
    n0 = NST[0]
    if os.environ.get("SPLIT", "0") == "1":
        A("s_cmp_ge_u32 s40, %d" % int(os.environ.get("SPLITW", "3")))
        A("s_cbranch_scc1 %s" % L("modeB"))
        ln_phase(True, "A")
        A("s_branch %s" % L("gemm"))
        A.label(L("modeB"))
        NST[0] = n0
        ln_phase(True, "B")
    else:
        ln_phase(True)
    A("s_branch %s" % L("gemm"))
    A.label(L("now"))
    n1 = NST[0]; NST[0] = n0
    ln_phase(False)
    if kind == "qkv" and os.environ.get("SIDE", "0") == "1":
        A("s_lshl_b32 s72, s2, 1")
        A("s_add_u32 s72, s72, s40")
        A("s_sub_u32 s72, s72, 6")
        A("s_lshl_b32 s92, s40, 12")
        A("s_add_u32 s92, s92, %d" % (57344 + 8192 - 6 * 4096))
        A.label(L("side"))
        emit_rl_decode(L, 72, 192, 2)
        emit_rl_body(192, 2, 7, 92, plain=(os.environ.get("SIDE_PLAIN", "0") == "1"))
        A("s_add_u32 s72, s72, 512")
        A("s_cmp_lt_u32 s72, 896")
        A("s_cbranch_scc1 %s" % L("side"))
    A("s_endpgm")
    A.label(L("gemm"))
    ACC = 8
    HB = 40
    def gemm(transposed):
        NPF = 3
        def rd(s):
            b = HB + 8 * (s % 4)
            A("ds_read_b128 %s, v7 offset:%d" % (vr(b, 4), s * 1024))
            A("ds_read_b128 %s, v7 offset:%d" % (vr(b + 4, 4), 28672 + s * 1024))
        for s in range(NPF):
            rd(s)
        for s in range(28):
            if s + NPF < 28:
                rd(s + NPF)
                A("s_waitcnt lgkmcnt(%d)" % (2 * NPF))
            else:
                A("s_waitcnt lgkmcnt(%d)" % (2 * (27 - s)))
            b = HB + 8 * (s % 4)
            A("s_waitcnt vmcnt(%d)" % (27 - s))
            for T in range(2):
                c = "0" if s == 0 else vr(ACC + 16 * T, 16)
                w = vr(WR + 4 * s, 4); h = vr(b + 4 * T, 4)
                if transposed:
                    A("v_mfma_f32_32x32x16_bf16 %s, %s, %s, %s" % (vr(ACC + 16 * T, 16), w, h, c))
                else:
                    A("v_mfma_f32_32x32x16_bf16 %s, %s, %s, %s" % (vr(ACC + 16 * T, 16), h, w, c))
        nops(16)
    def pack_store(T, srdreg, soff):
        for p in range(8):
            A("v_cvt_pk_bf16_f32 v%d, v%d, v%d" % (72 + p, ACC + 16 * T + 2 * p, ACC + 16 * T + 2 * p + 1))
        A("buffer_store_dwordx4 v[72:75], v7, s[%d:%d], %s offen" % (srdreg, srdreg + 3, soff))
        A("buffer_store_dwordx4 v[76:79], v7, s[%d:%d], %s offen offset:1024" % (srdreg, srdreg + 3, soff))
        A("s_nop 1")
    if kind == "qkv":
        srd(56, P_WS, Q_OFF, 3 * QKV_SZ)
        A("s_lshl_b32 s64, s42, 1")
        A("s_cmp_ge_u32 s40, 3")
        A("s_cselect_b32 s65, 1, 0")
        A("s_add_u32 s64, s64, s65")
        A("s_mul_i32 s65, s65, 3")
        A("s_sub_u32 s65, s40, s65")
        A("s_mul_i32 s66, s65, 0x%x" % QKV_SZ)
        A("s_lshl_b32 s67, s64, 17")
        A("s_add_u32 s66, s66, s67")
        A("s_lshl_b32 s67, s41, 12")
        A("s_add_u32 s66, s66, s67")
        A("s_add_u32 s67, s66, 2048")
        A("s_cmp_eq_u32 s65, 2")
        A("s_cbranch_scc1 %s" % L("v"))
        gemm(True)
        stamp()
        A("s_cmp_eq_u32 s65, 1")
        A("s_cbranch_scc1 %s" % L("kst"))
        import math
        A("s_mov_b32 s68, 0x%08x" % f2u(math.log2(math.e) / math.sqrt(28.0)))
        for r in range(32):
            A("v_mul_f32 v%d, s68, v%d" % (ACC + r, ACC + r))
        A.label(L("kst"))
        pack_store(0, 56, "s66")
        pack_store(1, 56, "s67")
        n0 = NST[0]
        stamp_flush()
        A("s_endpgm")
        NST[0] = n0
        A.label(L("v"))
        gemm(False)
        stamp()
        A("v_and_b32 v80, 31, v2")
        A("v_cmp_eq_u32 vcc, 28, v80")
        A("v_mov_b32 v81, 1.0")
        A("s_nop 1")
        for r in range(32):
            A("v_cndmask_b32 v%d, v%d, v81, vcc" % (ACC + r, ACC + r))
        pack_store(0, 56, "s66")
        pack_store(1, 56, "s67")
    else:
        srd(56, P_WS, H1_OFF, H1_SZ)
        gemm(True)
        stamp()
        for r in range(32):
            A("v_mul_f32 v%d, 0xbfb8aa3b, v%d" % (80 + r, ACC + r))
        for r in range(32):
            A("v_exp_f32 v%d, v%d" % (80 + r, 80 + r))
        for r in range(32):
            A("v_add_f32 v%d, 1.0, v%d" % (80 + r, 80 + r))
        for r in range(32):
            A("v_rcp_f32 v%d, v%d" % (80 + r, 80 + r))
        for r in range(32):
            A("v_mul_f32 v%d, v%d, v%d" % (ACC + r, ACC + r, 80 + r))
        A("s_lshl_b32 s66, s41, 1")
        A("s_mul_i32 s66, s66, %d" % (112 * 1024))
        A("s_lshl_b32 s67, s62, 11")
        A("s_add_u32 s66, s66, s67")
        A("s_add_u32 s67, s66, %d" % (112 * 1024))
        pack_store(0, 56, "s66")
        pack_store(1, 56, "s67")
    stamp_flush()
    kernel_end(name)
    kernel_desc(name, 240)
    return (name, 256, 512, 57344 + 8192 + 8192)

import struct
def f2u(f):
    return struct.unpack("<I", struct.pack("<f", f))[0]

def gen_attn():
    name = "attn_kernel"
    kernel_begin(name, 256)
    L = lambda s: "%s_%s" % (name, s)
    FLAG = 131072
    A("v_lshrrev_b32 v1, 6, v0")
    A("v_and_b32 v2, 63, v0")
    A("v_readfirstlane_b32 s40, v1")
    A("s_and_b32 s41, s2, 15")
    A("s_lshr_b32 s42, s2, 4")
    A("v_lshlrev_b32 v3, 4, v2")
    A("v_mov_b32 v4, %d" % FLAG)
    A("v_mov_b32 v5, 0")
    A("ds_write_b32 v4, v5")
    A("s_waitcnt lgkmcnt(0)")
    srd(44, P_WS, Q_OFF, QKV_SZ)
    srd(48, P_WS, K_OFF, QKV_SZ)
    srd(52, P_WS, V_OFF, QKV_SZ)
    srd(56, P_WS, O_OFF, O_SZ)
    A("s_lshl_b32 s60, s42, 2")
    A("s_add_u32 s60, s60, s40")
    A("s_lshl_b32 s61, s41, 6")
    A("s_add_u32 s61, s61, s60")
    A("s_lshl_b32 s61, s61, 11")
    QF = 8
    A("buffer_load_dwordx4 %s, v3, s[44:47], s61 offen" % vr(QF, 4))
    A("buffer_load_dwordx4 %s, v3, s[44:47], s61 offen offset:1024" % vr(QF + 4, 4))
    A("s_lshl_b32 s63, s40, 11")
    def dma_init():
        A("s_lshl_b32 s62, s41, 17")
        A("s_add_u32 s62, s62, s63")
        A("s_mov_b32 s64, 0")
    def dma():
        A("s_add_u32 s65, s64, s63")
        A("s_mov_b32 m0, s65")
        A("s_add_u32 s65, s65, 8192")
        A("buffer_load_dwordx4 v3, s[48:51], s62 offen lds")
        A("buffer_load_dwordx4 v3, s[48:51], s62 offen offset:1024 lds")
        A("s_mov_b32 m0, s65")
        A("s_add_u32 s64, s64, 16384")
        A("buffer_load_dwordx4 v3, s[52:55], s62 offen lds")
        A("buffer_load_dwordx4 v3, s[52:55], s62 offen offset:1024 lds")
        A("s_add_u32 s62, s62, 8192")
        A("s_and_b32 s64, s64, 0xffff")
    O = 16
    S = [32, 48]; P = [64, 72]; KF = [80, 88]; VF = [96, 104]; NM = 112
    VC, VN = 4, 5
    def mfma(d, a, b, c):
        A("v_mfma_f32_32x32x16_bf16 %s, %s, %s, %s" % (vr(d, 16), vr(a, 4), vr(b, 4), c if isinstance(c, str) else vr(c, 16)))
    CH = int(os.environ.get("ATT_CH", "8"))
    NCH = 64 // CH
    CB = CH * 2048
    NSL = 4
    SLB = 2 * CB
    PW = CB // 4 // 1024
    vmq = ["q", "q"]
    def VM(l, tag):
        A(l); vmq.append(tag)
    def vmwait(tag, extra=""):
        idx = max(i for i, t in enumerate(vmq) if t == tag)
        A("s_waitcnt vmcnt(%d) %s" % (len(vmq) - 1 - idx, extra))
    A("s_mul_i32 s69, s40, %d" % (CB // 4))
    A("s_lshl_b32 s70, s41, 17")
    A("s_add_u32 s70, s70, s69")
    def fdma(c):
        out = []
        slot = (c % NSL) * SLB
        for op, sr_ in ((0, 48), (1, 52)):
            for p in range(PW):
                if p % 4 == 0:
                    out.append(("s_add_u32 s71, s69, %d" % (slot + op * CB + p * 1024), None))
                    out.append(("s_mov_b32 m0, s71", None))
                    out.append(("s_add_u32 s72, s70, %d" % (c * CB + p * 1024), None))
                out.append(("buffer_load_dwordx4 v3, s[%d:%d], s72 offen offset:%d lds" % (sr_, sr_ + 3, 1024 * (p % 4)), "c%d" % c))
        return out
    pend = []
    def drip(n):
        k = 0
        while pend and k < n:
            l, tag = pend.pop(0)
            if tag: VM(l, tag); k += 1
            else: A(l)
    pend += fdma(0); drip(1000)
    pend += fdma(1) + fdma(2)
    for r in range(16):
        A("v_mov_b32 v%d, 0" % (O + r))
    for r in range(8):
        A("v_mov_b32 v%d, 0" % (P[1] + r))
        A("v_mov_b32 v%d, 0" % (VF[1] + r))
    A("v_add_u32 v4, 0x10000, v3")
    def lds(dst, addr):
        if addr >= 65536:
            A("ds_read_b128 %s, v4 offset:%d" % (vr(dst, 4), addr - 65536))
        else:
            A("ds_read_b128 %s, v3 offset:%d" % (vr(dst, 4), addr))
    def kaddr(i): return ((i // CH) % NSL) * SLB + (i % CH) * 2048
    def vaddr(i): return ((i // CH) % NSL) * SLB + CB + (i % CH) * 2048
    stamp()
    vmwait("c0")
    A("s_barrier")
    stamp()
    drip(2 * PW)
    lds(KF[0], kaddr(0)); lds(KF[0] + 4, kaddr(0) + 1024)
    lds(KF[1], kaddr(1)); lds(KF[1] + 4, kaddr(1) + 1024)
    A("s_waitcnt lgkmcnt(2)")
    mfma(S[0], KF[0], QF, "0")
    mfma(S[0], KF[0] + 4, QF + 4, S[0])
    nops(16)
    s0 = S[0]
    A("v_max3_f32 v6, v%d, v%d, v%d" % (s0, s0 + 1, s0 + 2))
    for r in range(3, 15, 2):
        A("v_max3_f32 v6, v6, v%d, v%d" % (s0 + r, s0 + r + 1))
    A("v_max_f32 v6, v6, v%d" % (s0 + 15))
    A("v_mov_b32 v7, v6")
    A("s_nop 1")
    A("v_permlane32_swap_b32 v6, v7")
    A("s_nop 1")
    A("v_max_f32 v6, v6, v7")
    for r in range(16):
        A("v_sub_f32 v%d, 0, v6" % (NM + r))
    for r in range(16):
        A("v_sub_f32 v%d, v%d, v6" % (s0 + r, s0 + r))
    stamp()
    for i in range(64):
        c, t = i // CH, i % CH
        b = i & 1
        sc, sn = S[b], S[b ^ 1]
        pc, pp = P[b], P[b ^ 1]
        kn = KF[b ^ 1]; kl = KF[b]; vl = VF[b]; vp = VF[b ^ 1]
        if t == CH - 2 and c + 1 < NCH:
            assert not pend
            vmwait("c%d" % (c + 1), "lgkmcnt(0)")
            A("s_barrier")
            if c + 3 < NCH:
                pend += fdma(c + 3)
        else:
            A("s_waitcnt lgkmcnt(0)")
        def expcvt(q):
            for r in range(4 * q, 4 * q + 4):
                A("v_exp_f32 v%d, v%d" % (sc + r, sc + r))
            A("v_cvt_pk_bf16_f32 v%d, v%d, v%d" % (pc + 2 * q, sc + 4 * q, sc + 4 * q + 1))
            A("v_cvt_pk_bf16_f32 v%d, v%d, v%d" % (pc + 2 * q + 1, sc + 4 * q + 2, sc + 4 * q + 3))
        if i + 1 < 64: mfma(sn, kn, QF, NM)
        if i + 2 < 64:
            lds(kl, kaddr(i + 2)); lds(kl + 4, kaddr(i + 2) + 1024)
        expcvt(0)
        if i > 0: mfma(O, vp, pp, O)
        lds(vl, vaddr(i)); lds(vl + 4, vaddr(i) + 1024)
        drip(1)
        expcvt(1)
        if i + 1 < 64: mfma(sn, kn + 4, QF + 4, sn)
        drip(1)
        expcvt(2)
        if i > 0: mfma(O, vp + 4, pp + 4, O)
        expcvt(3)
    assert not pend
    stamp()
    A("s_waitcnt lgkmcnt(0)")
    mfma(O, VF[1], P[1], O)
    mfma(O, VF[1] + 4, P[1] + 4, O)
    nops(16)
    A("v_mov_b32 v6, v%d" % (O + 12))
    A("v_mov_b32 v7, v%d" % (O + 12))
    A("s_nop 1")
    A("v_permlane32_swap_b32 v6, v7")
    A("v_and_b32 v6, 0x7fffffff, v%d" % O)
    for r in range(1, 16):
        A("v_add_f32 v6, v6, abs(v%d)" % (O + r))
    A("v_add_f32 v6, v6, v7")
    A("v_mov_b32 v1, 0x7b800000")
    A("v_cmp_nlt_f32 vcc, v6, v1")
    A("s_nop 3")
    A("s_cmp_eq_u64 vcc, 0")
    A("s_cbranch_scc1 %s" % L("ok"))
    A("v_mov_b32 v4, %d" % FLAG)
    A("v_mov_b32 v5, 1")
    A("ds_write_b32 v4, v5")
    A.label(L("ok"))
    A("v_mov_b32 v4, %d" % FLAG)
    A("s_waitcnt lgkmcnt(0)")
    A("s_barrier")
    A("ds_read_b32 v5, v4")
    A("s_waitcnt lgkmcnt(0)")
    A("v_readfirstlane_b32 s68, v5")
    A("s_nop 3")
    A("s_cmp_eq_u32 s68, 0")
    A("s_cbranch_scc1 %s" % L("epi"))
    stamp()
    A("s_barrier")
    dma_init()
    dma(); dma(); dma()
    S0 = 32; KF0 = 48; VF0 = 56; P0 = 64
    for r in range(16):
        A("v_mov_b32 v%d, 0" % (O + r))
    A("v_mov_b32 v72, 0xff800000")
    A("s_mov_b32 s66, 0")
    A("s_mov_b32 s67, 0")
    A.label(L("loop"))
    A("s_cmp_ge_u32 s66, 13")
    A("s_cbranch_scc1 %s" % L("w0"))
    A("s_waitcnt vmcnt(8)")
    A("s_barrier")
    dma()
    A("s_branch %s" % L("go"))
    A.label(L("w0"))
    A("s_waitcnt vmcnt(0)")
    A("s_barrier")
    A.label(L("go"))
    A("v_add_u32 v4, s67, v3")
    for t in range(4):
        A("ds_read_b128 %s, v4 offset:%d" % (vr(KF0, 4), 2048 * t))
        A("ds_read_b128 %s, v4 offset:%d" % (vr(KF0 + 4, 4), 2048 * t + 1024))
        A("ds_read_b128 %s, v4 offset:%d" % (vr(VF0, 4), 8192 + 2048 * t))
        A("ds_read_b128 %s, v4 offset:%d" % (vr(VF0 + 4, 4), 8192 + 2048 * t + 1024))
        A("s_waitcnt lgkmcnt(2)")
        mfma(S0, KF0, QF, "0")
        mfma(S0, KF0 + 4, QF + 4, S0)
        nops(16)
        A("v_max3_f32 v73, v%d, v%d, v%d" % (S0, S0 + 1, S0 + 2))
        for r in range(3, 15, 2):
            A("v_max3_f32 v73, v73, v%d, v%d" % (S0 + r, S0 + r + 1))
        A("v_max_f32 v73, v73, v%d" % (S0 + 15))
        A("v_mov_b32 v74, v73")
        A("s_nop 1")
        A("v_permlane32_swap_b32 v73, v74")
        A("s_nop 1")
        A("v_max3_f32 v73, v73, v74, v72")
        A("v_sub_f32 v74, v72, v73")
        A("v_exp_f32 v74, v74")
        A("v_mov_b32 v72, v73")
        for r in range(16):
            A("v_sub_f32 v%d, v%d, v73" % (S0 + r, S0 + r))
        for r in range(16):
            A("v_exp_f32 v%d, v%d" % (S0 + r, S0 + r))
        for r in range(16):
            A("v_mul_f32 v%d, v%d, v74" % (O + r, O + r))
        for p in range(8):
            A("v_cvt_pk_bf16_f32 v%d, v%d, v%d" % (P0 + p, S0 + 2 * p, S0 + 2 * p + 1))
        A("s_waitcnt lgkmcnt(0)")
        A("s_nop 1")
        mfma(O, VF0, P0, O)
        mfma(O, VF0 + 4, P0 + 4, O)
        nops(16)
    A("s_add_u32 s67, s67, 16384")
    A("s_and_b32 s67, s67, 0xffff")
    A("s_add_u32 s66, s66, 1")
    A("s_cmp_lt_u32 s66, 16")
    A("s_cbranch_scc1 %s" % L("loop"))
    A("v_mov_b32 v6, v%d" % (O + 12))
    A("v_mov_b32 v7, v%d" % (O + 12))
    A("s_nop 1")
    A("v_permlane32_swap_b32 v6, v7")
    A.label(L("epi"))
    A("s_nop 1")
    A("v_rcp_f32 v7, v7")
    A("s_nop 0")
    for r in range(16):
        A("v_mul_f32 v%d, v%d, v7" % (O + r, O + r))
    for p in range(8):
        A("v_cvt_pk_bf16_f32 v%d, v%d, v%d" % (64 + p, O + 2 * p, O + 2 * p + 1))
    A("s_lshl_b32 s60, s60, 5")
    A("s_lshl_b32 s61, s41, 1")
    A("s_add_u32 s60, s60, s61")
    A("s_lshl_b32 s60, s60, 10")
    A("buffer_store_dwordx4 %s, v3, s[56:59], s60 offen" % vr(64, 4))
    A("buffer_store_dwordx4 %s, v3, s[56:59], s60 offen offset:1024" % vr(68, 4))
    stamp_flush()
    kernel_end(name)
    kernel_desc(name, 128)
    return (name, 256, 256, 131072 + 64)

def gen_skgemm(kind):
    name = "wo_kernel" if kind == "wo" else "mlp2_kernel"
    KS = 32 if kind == "wo" else 112
    KW = KS // 8
    kernel_begin(name, 224)
    A("v_lshrrev_b32 v1, 6, v0")
    A("v_and_b32 v2, 63, v0")
    A("v_readfirstlane_b32 s40, v1")
    A("s_and_b32 s41, s2, 31")
    A("s_lshr_b32 s42, s2, 5")
    A("v_lshlrev_b32 v3, 4, v2")
    A("s_waitcnt lgkmcnt(0)")
    if kind == "wo":
        srd(44, P_WS, O_OFF, O_SZ)
        srd(48, P_WS, WO_OFF, WO_SZ)
        srd(52, P_X, 0, X_SZ)
        srd(56, P_WS, MOD_OFF + 896 * 4, 1792)
        srd(60, P_WS, X2_OFF, X_SZ)
    else:
        srd(44, P_WS, H1_OFF, H1_SZ)
        srd(48, P_WS, W2_OFF, W2_SZ)
        srd(52, P_WS, X2_OFF, X_SZ)
        srd(56, P_WS, MOD_OFF + 2240 * 4, 1792)
        srd(60, P_OUT, 0, X_SZ)
    A("s_mul_i32 s64, s40, %d" % (KW * 1024))
    A("s_mul_i32 s65, s41, %d" % (2 * KS * 1024))
    A("s_add_u32 s65, s65, s64")
    A("s_add_u32 s66, s65, %d" % (KS * 1024))
    A("s_mul_i32 s67, s42, %d" % (2 * KS * 1024))
    A("s_add_u32 s67, s67, s64")
    A("s_add_u32 s68, s67, %d" % (KS * 1024))
    NB = min(KW, int(os.environ.get('NB', '8')))
    FB = 80
    ACC = 8
    def ld(s):
        b = FB + 16 * (s % NB)
        A("buffer_load_dwordx4 %s, v3, s[44:47], s65 offen offset:%d" % (vr(b, 4), 1024 * (s & 3)))
        A("buffer_load_dwordx4 %s, v3, s[44:47], s66 offen offset:%d" % (vr(b + 4, 4), 1024 * (s & 3)))
        A("buffer_load_dwordx4 %s, v3, s[48:51], s67 offen offset:%d" % (vr(b + 8, 4), 1024 * (s & 3)))
        A("buffer_load_dwordx4 %s, v3, s[48:51], s68 offen offset:%d" % (vr(b + 12, 4), 1024 * (s & 3)))
        if (s & 3) == 3:
            for r in (65, 66, 67, 68):
                A("s_add_u32 s%d, s%d, 4096" % (r, r))
    stamp()
    for s in range(NB):
        ld(s)
    stamp()
    issued = NB
    for s in range(KW):
        A("s_waitcnt vmcnt(%d)" % (4 * (issued - s - 1)))
        b = FB + 16 * (s % NB)
        for T in range(2):
            for C in range(2):
                acc = vr(ACC + 16 * (2 * T + C), 16)
                c = "0" if s == 0 else acc
                A("v_mfma_f32_32x32x16_bf16 %s, %s, %s, %s" % (acc, vr(b + 8 + 4 * C, 4), vr(b + 4 * T, 4), c))
        if issued < KW:
            ld(issued)
            issued += 1
    stamp()
    nops(16)
    A("v_and_b32 v4, 31, v2")
    A("v_mul_u32_u24 v4, 272, v4")
    A("v_lshrrev_b32 v5, 5, v2")
    A("v_lshl_add_u32 v4, v5, 4, v4")
    A("s_mul_i32 s69, s40, %d" % (64 * 272))
    A("v_add_u32 v4, s69, v4")
    for T in range(2):
        for C in range(2):
            for q in range(4):
                A("ds_write_b128 v4, %s offset:%d" % (vr(ACC + 16 * (2 * T + C) + 4 * q, 4), T * 32 * 272 + C * 128 + q * 32))
    A("v_lshrrev_b32 v5, 3, v0")
    A("v_and_b32 v6, 7, v0")
    A("s_lshl_b32 s69, s41, 6")
    A("v_add_u32 v7, s69, v5")
    A("v_mul_u32_u24 v7, 896, v7")
    A("v_lshl_add_u32 v7, v6, 4, v7")
    A("s_lshl_b32 s70, s42, 7")
    A("buffer_load_dwordx4 v[72:75], v7, s[52:55], s70 offen")
    A("v_lshlrev_b32 v76, 5, v6")
    A("s_lshl_b32 s71, s42, 8")
    A("buffer_load_dwordx4 v[80:83], v76, s[56:59], s71 offen")
    A("buffer_load_dwordx4 v[84:87], v76, s[56:59], s71 offen offset:16")
    A("v_mul_u32_u24 v4, 272, v5")
    A("v_lshl_add_u32 v4, v6, 5, v4")
    A("s_waitcnt lgkmcnt(0)")
    stamp()
    A("s_barrier")
    stamp()
    for w in range(8):
        if w * 64 * 272 + 16 < 65536 - 16:
            A("ds_read_b128 %s, v4 offset:%d" % (vr(88 + 8 * w, 4), w * 64 * 272))
            A("ds_read_b128 %s, v4 offset:%d" % (vr(92 + 8 * w, 4), w * 64 * 272 + 16))
        else:
            if w == 4:
                A("v_add_u32 v4, %d, v4" % (4 * 64 * 272))
            A("ds_read_b128 %s, v4 offset:%d" % (vr(88 + 8 * w, 4), (w - 4) * 64 * 272))
            A("ds_read_b128 %s, v4 offset:%d" % (vr(92 + 8 * w, 4), (w - 4) * 64 * 272 + 16))
    A("s_waitcnt lgkmcnt(0)")
    for w in range(1, 8):
        for j in range(8):
            A("v_add_f32 v%d, v%d, v%d" % (88 + j, 88 + j, 88 + 8 * w + j))
    A("s_waitcnt vmcnt(0)")
    for p in range(4):
        A("v_lshlrev_b32 v%d, 16, v%d" % (100 + 2 * p, 72 + p))
        A("v_and_b32 v%d, 0xffff0000, v%d" % (101 + 2 * p, 72 + p))
    for j in range(8):
        A("v_fmac_f32 v%d, v%d, v%d" % (100 + j, 88 + j, 80 + j))
    for p in range(4):
        A("v_cvt_pk_bf16_f32 v%d, v%d, v%d" % (108 + p, 100 + 2 * p, 101 + 2 * p))
    A("buffer_store_dwordx4 v[108:111], v7, s[60:63], s70 offen")
    stamp_flush()
    kernel_end(name)
    kernel_desc(name, max(FB + 16 * NB, 160))
    return (name, 224, 512, 8 * 64 * 272)

def gen_nop():
    name = "nop_kernel"
    kernel_begin(name, 1)
    kernel_end(name)
    kernel_desc(name, 8)
    return (name, 1, 64, 0)

def main():
    launches = []
    nn = int(os.environ.get("NOPS", "0"))
    if nn:
        l = gen_nop()
        launches += [l] * nn
    launches.append(gen_prep())
    launches.append(gen_lngemm("qkv"))
    launches.append(gen_attn())
    launches.append(gen_skgemm("wo"))
    launches.append(gen_lngemm("mlp1"))
    launches.append(gen_skgemm("mlp2"))
    hdr = open("cdna_kernels/%s.s.ref" % NAME).read().split("\n")
    out = []
    for l in hdr:
        if l.startswith("; @launch") or l.startswith("; Override"):
            continue
        if not l.startswith(";"):
            break
        out.append(l)
    only = sys.argv[2] if len(sys.argv) > 2 else None
    for (n, g, b, lds) in launches:
        out.append("; @launch kernel=%s grid=(%d,1,1) block=(%d,1,1) lds=%d" % (n, g, b, lds))
        if os.environ.get("DUP", "") and os.environ["DUP"] in n:
            out.append("; @launch kernel=%s grid=(%d,1,1) block=(%d,1,1) lds=%d" % (n, g, b, lds))
    out.append('.amdgcn_target "amdgcn-amd-amdhsa--gfx950"')
    out.append(".text")
    out += A.lines
    out.append('.section .rodata,"a"')
    for k in KDS:
        out.append(".p2align 6")
        out.append(k)
    open(sys.argv[1], "w").write("\n".join(out) + "\n")

if __name__ == "__main__":
    main()
```

```python
import sys

NAME = "adaLN_cond__softmax_full_mha__dense_activation_silu__prompt"

def al(x, a=65536): return (x + a - 1) // a * a
MOD_OFF = 0;                 MOD_SZ = 2688 * 4
WQKV_OFF = al(MOD_OFF + MOD_SZ); WQKV_SZ = 48 * 28 * 1024
WO_OFF = al(WQKV_OFF + WQKV_SZ); WO_SZ = 14 * 32 * 1024
W1_OFF = al(WO_OFF + WO_SZ);  W1_SZ = 56 * 28 * 1024
W2_OFF = al(W1_OFF + W1_SZ);  W2_SZ = 14 * 112 * 1024
Q_OFF = al(W2_OFF + W2_SZ);   QKV_SZ = 16 * 64 * 2 * 1024
K_OFF = Q_OFF + QKV_SZ
V_OFF = K_OFF + QKV_SZ
O_OFF = V_OFF + QKV_SZ;       O_SZ = 64 * 32 * 1024
X2_OFF = al(O_OFF + O_SZ);    X_SZ = 2048 * 448 * 2
H1_OFF = al(X2_OFF + X_SZ);   H1_SZ = 64 * 112 * 1024
WS_END = H1_OFF + H1_SZ

import os
STF = os.environ.get("STF", "sc1")
class Asm:
    def __init__(self):
        self.lines = []
        self.uid = 0
    def __call__(self, s):
        for l in s.strip().split("\n"):
            l = l.strip()
            if l.endswith("#plain"):
                l = l[:-6].strip()
                if os.environ.get("PLAINF"): l = l + " " + os.environ["PLAINF"]
            elif STF and l.startswith("buffer_store_dwordx4"):
                l = l + " " + STF
            self.lines.append("    " + l)
    def label(self, l):
        self.lines.append(l + ":")
    def new(self, p="L"):
        self.uid += 1
        return "%s_%d" % (p, self.uid)
    def raw(self, s):
        self.lines.append(s)

A = Asm()

def vr(b, n=1):
    return "v%d" % b if n == 1 else "v[%d:%d]" % (b, b + n - 1)
def sr(b, n=1):
    return "s%d" % b if n == 1 else "s[%d:%d]" % (b, b + n - 1)

P_X, P_WQKV, P_WO, P_BX, P_W1, P_W2, P_C, P_WMOD = 16, 18, 20, 22, 24, 26, 28, 30
P_OUT, P_DBG, P_WS = 32, 34, 36

def kernel_begin(name, nwg):
    NST[0] = 0
    KIDX[0] = len(KDS)
    A.raw(".globl %s" % name)
    A.raw(".p2align 8")
    A.raw(".type %s,@function" % name)
    A.label(name)
    A("s_cmp_ge_u32 s2, %d" % nwg)
    A("s_cbranch_scc1 %s_end" % name)
    A("s_load_dwordx16 s[16:31], s[0:1], 0")
    A("s_load_dwordx4 s[32:35], s[0:1], 64")
    A("s_load_dwordx2 s[36:37], s[0:1], 80")
    if STAMP:
        A("s_memrealtime s[96:97]")
        A("v_mov_b32 v255, 0")

def kernel_end(name):
    A.label(name + "_end")
    A("s_endpgm")

KDS = []
def kernel_desc(name, vgpr, sgpr=100):
    if STAMP: vgpr = 256
    vg = (vgpr + 7) // 8 * 8
    KDS.append(""".amdhsa_kernel %s
  .amdhsa_next_free_vgpr %d
  .amdhsa_next_free_sgpr %d
  .amdhsa_accum_offset %d
  .amdhsa_group_segment_fixed_size 0
  .amdhsa_kernarg_size 88
  .amdhsa_user_sgpr_count 2
  .amdhsa_user_sgpr_kernarg_segment_ptr 1
  .amdhsa_system_sgpr_workgroup_id_x 1
.end_amdhsa_kernel""" % (name, vg, sgpr, vg))

def srd(d, p, off, size):
    if off:
        A("s_add_u32 s%d, s%d, 0x%x" % (d, p, off))
        A("s_addc_u32 s%d, s%d, 0" % (d + 1, p + 1))
    else:
        A("s_mov_b32 s%d, s%d" % (d, p))
        A("s_mov_b32 s%d, s%d" % (d + 1, p + 1))
    A("s_mov_b32 s%d, 0x%x" % (d + 2, size))
    A("s_mov_b32 s%d, 0x20000" % (d + 3))

import os
STAMP = 1 if os.environ.get("STAMP", "") not in ("", "0") else 0
STAMP_OFF = 48 << 20
KIDX = [0]
NST = [0]
def stamp():
    if not STAMP: return
    i = NST[0]
    if i >= 13: return
    NST[0] += 1
    A("s_memtime s[92:93]")
    A("s_waitcnt lgkmcnt(0)")
    A("v_writelane_b32 v255, s92, %d" % i)
def stamp_flush(tmpv=250):
    if not STAMP: return
    stamp()
    srd(72, P_WS, STAMP_OFF + KIDX[0] * 256 * 16 * 64, 256 * 16 * 64)
    A("s_memrealtime s[92:93]")
    A("s_waitcnt lgkmcnt(0)")
    A("v_writelane_b32 v255, s96, 14")
    A("v_writelane_b32 v255, s92, 15")
    A("v_lshrrev_b32 v%d, 6, v0" % tmpv)
    A("s_lshl_b32 s94, s2, 4")
    A("v_add_u32 v%d, s94, v%d" % (tmpv, tmpv))
    A("v_lshlrev_b32 v%d, 6, v%d" % (tmpv, tmpv))
    A("v_and_b32 v%d, 63, v0" % (tmpv + 1))
    A("v_lshl_add_u32 v%d, v%d, 2, v%d" % (tmpv, tmpv + 1, tmpv))
    A("s_mov_b64 exec, 0xffff")
    A("buffer_store_dword v255, v%d, s[72:75], 0 offen" % tmpv)
    A("s_waitcnt vmcnt(0)")
    A("s_mov_b64 exec, -1")

def nops(n):
    while n > 0:
        k = min(n, 16)
        A("s_nop %d" % (k - 1))
        n -= k

def gen_prep():
    name = "prep_kernel"
    NW_MOD, NW_QKV, NW_WO, NW_W1, NW_W2 = 21, 48, (56 if (os.environ.get('SIDE', '0') == '0' and os.environ.get('HELP', '1') == '0') else 16), 0, 0
    b1 = NW_MOD; b2 = b1 + NW_QKV; b3 = b2 + NW_WO; b4 = b3 + NW_W1; b5 = b4 + NW_W2
    kernel_begin(name, b5)
    A("v_and_b32 v1, 7, v0")
    A("v_bfe_u32 v2, v0, 3, 1")
    A("v_lshrrev_b32 v3, 4, v0")
    A("s_waitcnt lgkmcnt(0)")
    A("s_cmp_lt_u32 s2, %d" % b1)
    A("s_cbranch_scc1 prep_mod")
    A("s_mov_b32 s60, 0x05040100")
    A("s_mov_b32 s61, 0x07060302")
    A("s_cmp_lt_u32 s2, %d" % b2)
    A("s_cbranch_scc1 prep_qkv")
    A("v_lshrrev_b32 v40, 6, v0")
    A("v_and_b32 v41, 63, v0")
    A("v_readfirstlane_b32 s40, v40")
    A("v_lshlrev_b32 v42, 4, v41")
    A("s_sub_u32 s72, s2, %d" % b2)
    A("s_lshl_b32 s72, s72, 3")
    A("s_add_u32 s72, s72, s40")
    if os.environ.get('SIDE', '0') == '1':
        A("s_add_u32 s72, s72, 896")
    PL = lambda s: "prep_%s" % s
    if os.environ.get('SIDE', '0') == '1':
        A("s_lshl_b32 s92, s40, 12")
        emit_rl_decode(PL, 72, 48, 41)
        emit_rl_body(48, 41, 42, 92, plain=True)
    elif os.environ.get('HELP', '1') == '0':
        A("s_lshl_b32 s92, s40, 13")
        emit_rl2(PL, 72, 48, 41, 42, 92)
    if os.environ.get("CPF", "1") == "1":
        A("s_cmp_ge_u32 s2, %d" % (b2 + 16))
        A("s_cbranch_scc1 prep_nopf")
        A("s_getpc_b64 s[94:95]")
        A.label("prep_pc")
        A("s_add_u32 s94, s94, qkv_kernel-prep_pc")
        A("s_addc_u32 s95, s95, 0")
        A("v_lshlrev_b32 v43, 6, v0")
        A("global_load_dword v44, v43, s[94:95]")
        A("v_add_u32 v43, 0x8000, v43")
        A("v_cmp_gt_u32 vcc, (mlp2_kernel_end-qkv_kernel), v43")
        A("s_and_saveexec_b64 s[96:97], vcc")
        A("s_cbranch_execz prep_nopf")
        A("global_load_dword v45, v43, s[94:95]")
        A.label("prep_nopf")
    if os.environ.get("PF2", "0") == "1":
        A("s_mov_b64 exec, -1")
        A("s_cmp_ge_u32 s2, %d" % (b2 + 16))
        A("s_cbranch_scc1 prep_nopf2")
        srd(40, P_X, 0, X_SZ)
        A("s_sub_u32 s44, s2, %d" % b2)
        A("s_mul_i32 s44, s44, 114688")
        A("v_lshlrev_b32 v43, 4, v0")
        for i in range(14):
            A("buffer_load_dwordx4 v[48:51], v43, s[40:43], s44 offen")
            A("s_add_u32 s44, s44, 8192")
        srd(40, P_WS, 0, WS_END)
        A("v_lshlrev_b32 v43, 16, v0")
        A("buffer_load_dword v52, v43, s[40:43], 0 offen")
        srd(44, P_OUT, 0, X_SZ)
        A("buffer_load_dword v53, v43, s[44:47], 0 offen")
        A.label("prep_nopf2")
    stamp_flush()
    NST[0] = 0
    A("s_endpgm")
    def common(RS, nunits):
        A("s_mov_b32 s50, %d" % RS)
        A("s_mov_b32 s51, %d" % (2 * RS))
        A("s_mov_b32 s52, %d" % (3 * RS))
        if nunits < 512:
            A("v_cmp_gt_u32 vcc, %d, v0" % nunits)
            A("s_and_saveexec_b64 s[54:55], vcc")
            A("s_cbranch_execz %s_end" % name)
        for grp, vo in ((0, 4), (1, 5)):
            for i in range(4):
                so = "0" if i == 0 else "s%d" % (49 + i)
                A("buffer_load_dwordx2 %s, v%d, s[40:43], %s offen" % (vr(8 + 2 * (grp * 4 + i), 2), vo, so))
        A("v_lshlrev_b32 v6, 6, v0")
        A("s_waitcnt vmcnt(0)")
        for i in range(4):
            sel = "s61" if (i & 1) else "s60"
            for p in range(4):
                A("v_perm_b32 v%d, v%d, v%d, %s" % (24 + 4 * i + p, 8 + 2 * (2 * p + 1) + (i >> 1), 8 + 2 * (2 * p) + (i >> 1), sel))
        for i in range(4):
            A("ds_write_b128 v6, %s offset:%d" % (vr(24 + 4 * i, 4), 16 * i))
        A("v_and_b32 v7, 63, v0")
        A("v_lshrrev_b32 v6, 6, v0")
        A("v_lshlrev_b32 v6, 12, v6")
        A("v_lshl_add_u32 v6, v7, 4, v6")
        A("s_waitcnt lgkmcnt(0)")
        for i in range(4):
            A("ds_read_b128 %s, v6 offset:%d" % (vr(24 + 4 * i, 4), 1024 * i))
        for i in range(4):
            A("s_waitcnt lgkmcnt(%d)" % (3 - i))
            A("buffer_store_dwordx4 %s, v6, s[44:47], s48 offen offset:%d" % (vr(24 + 4 * i, 4), 1024 * i))
        n0 = NST[0]
        stamp_flush()
        NST[0] = n0
        A("s_endpgm")

    A.label("prep_qkv")
    RS = 2688
    A("s_sub_u32 s56, s2, %d" % b1)
    A("s_mul_i32 s57, s56, 171")
    A("s_lshr_b32 s57, s57, 9")
    A("s_mul_i32 s58, s57, 3")
    A("s_sub_u32 s58, s56, s58")
    A("s_mul_i32 s58, s58, 896")
    A("s_mul_i32 s57, s57, 56")
    A("s_add_u32 s58, s58, s57")
    srd(40, P_WQKV, 0, 448 * 1344 * 2)
    srd(44, P_WS, WQKV_OFF, WQKV_SZ)
    A("s_mul_i32 s48, s56, %d" % (28 * 1024))
    A("v_lshlrev_b32 v4, 4, v3")
    A("v_lshl_add_u32 v4, v2, 3, v4")
    A("s_mov_b32 s59, %d" % RS)
    A("v_mul_lo_u32 v4, v4, s59")
    A("v_lshl_add_u32 v4, v1, 3, v4")
    A("v_add_u32 v4, s58, v4")
    A("v_add_u32 v5, %d, v4" % (4 * RS))
    A("v_mov_b32 v7, 0x7f000000")
    A("v_cmp_eq_u32 vcc, 7, v1")
    A("s_nop 1")
    A("v_cndmask_b32 v4, v4, v7, vcc")
    A("v_cndmask_b32 v5, v5, v7, vcc")
    common(RS, 448)

    A.label("prep_mod")
    stamp()
    srd(40, P_WMOD, 0, 448 * 2688 * 2)
    srd(44, P_C, 0, 896)
    srd(48, P_WS, MOD_OFF, MOD_SZ)
    A("v_lshrrev_b32 v1, 6, v0")
    A("v_and_b32 v2, 63, v0")
    A("v_readfirstlane_b32 s56, v1")
    A("s_nop 3")
    A("s_mul_i32 s57, s56, 112")
    A("v_lshlrev_b32 v3, 1, v2")
    A("buffer_load_ushort v4, v3, s[44:47], s57 offen")
    A("s_lshl_b32 s58, s2, 8")
    A("v_lshlrev_b32 v5, 2, v2")
    A("v_add_u32 v5, s58, v5")
    A("s_mul_i32 s59, s56, %d" % (56 * 5376))
    for i in range(56):
        A("buffer_load_dword v%d, v5, s[40:43], s59 offen" % (16 + i))
        A("s_add_u32 s59, s59, 5376")
    stamp()
    A("s_waitcnt vmcnt(56)")
    stamp()
    A("v_lshlrev_b32 v4, 16, v4")
    A("v_mul_f32 v6, 0xbfb8aa3b, v4")
    A("v_exp_f32 v6, v6")
    A("s_nop 0")
    A("v_add_f32 v6, 1.0, v6")
    A("v_rcp_f32 v6, v6")
    A("s_nop 0")
    A("v_mul_f32 v6, v4, v6")
    A("v_mov_b32 v8, 0")
    A("v_mov_b32 v9, 0")
    for i in range(56):
        A("v_readlane_b32 s60, v6, %d" % i)
        A("s_waitcnt vmcnt(%d)" % (55 - i))
        A("v_lshlrev_b32 v10, 16, v%d" % (16 + i))
        A("v_and_b32 v11, 0xffff0000, v%d" % (16 + i))
        A("v_fmac_f32 v8, s60, v10")
        A("v_fmac_f32 v9, s60, v11")
    stamp()
    A("v_lshlrev_b32 v12, 3, v0")
    A("ds_write_b64 v12, v[8:9]")
    A("s_waitcnt lgkmcnt(0)")
    A("s_barrier")
    A("s_cmp_lg_u32 s56, 0")
    A("s_cbranch_scc1 %s_end" % name)
    for w in range(8):
        A("ds_read_b64 %s, v12 offset:%d" % (vr(16 + 2 * w, 2), 512 * w))
    A("s_waitcnt lgkmcnt(0)")
    for w in range(1, 8):
        A("v_add_f32 v16, v16, v%d" % (16 + 2 * w))
        A("v_add_f32 v17, v17, v%d" % (17 + 2 * w))
    A("s_lshl_b32 s58, s2, 7")
    A("v_lshlrev_b32 v3, 1, v2")
    A("v_add_u32 v3, s58, v3")
    A("v_subrev_u32 v10, 448, v3")
    A("v_cmp_gt_u32 vcc, 448, v10")
    A("s_nop 1")
    A("s_mov_b64 s[62:63], vcc")
    A("v_subrev_u32 v11, 1792, v3")
    A("v_cmp_gt_u32 vcc, 448, v11")
    A("s_nop 1")
    A("s_or_b64 vcc, vcc, s[62:63]")
    A("v_add_f32 v18, 1.0, v16")
    A("v_add_f32 v19, 1.0, v17")
    A("s_nop 1")
    A("v_cndmask_b32 v16, v16, v18, vcc")
    A("v_cndmask_b32 v17, v17, v19, vcc")
    A("v_lshlrev_b32 v3, 2, v3")
    A("buffer_store_dwordx2 v[16:17], v3, s[48:51], 0 offen")
    stamp_flush()
    kernel_end(name)
    kernel_desc(name, 128)
    return (name, b5, 512, 65536)


def emit_rl2(L, su, RL, lane, lane16, scr, mid=None, plain=True):
    A("s_cmp_lt_u32 s%d, 56" % su)
    A("s_cbranch_scc1 %s" % L("r2_wo"))
    A("s_cmp_lt_u32 s%d, 252" % su)
    A("s_cbranch_scc1 %s" % L("r2_w1"))
    A("s_sub_u32 s74, s%d, 252" % su)
    A("s_mul_i32 s75, s74, 2341")
    A("s_lshr_b32 s75, s75, 16")
    A("s_mul_i32 s76, s75, 28")
    A("s_sub_u32 s76, s74, s76")
    srd(84, P_W2, 0, 1792 * 448 * 2)
    A("s_mov_b32 s77, 896")
    A("s_mov_b32 s78, 32")
    A("s_mov_b32 s79, 4")
    A("s_mov_b32 s80, 112")
    A("s_mov_b32 s81, 0x%x" % W2_OFF)
    A("s_mov_b32 s82, 0")
    A("s_branch %s" % L("r2_go"))
    A.label(L("r2_w1"))
    A("s_sub_u32 s74, s%d, 56" % su)
    A("s_mul_i32 s75, s74, 9363")
    A("s_lshr_b32 s75, s75, 16")
    A("s_mul_i32 s76, s75, 7")
    A("s_sub_u32 s76, s74, s76")
    srd(84, P_W1, 0, 448 * 1792 * 2)
    A("s_mov_b32 s77, 3584")
    A("s_mov_b32 s78, 32")
    A("s_mov_b32 s79, 8")
    A("s_mov_b32 s80, 28")
    A("s_mov_b32 s81, 0x%x" % W1_OFF)
    A("s_mov_b32 s82, 0")
    A("s_branch %s" % L("r2_go"))
    A.label(L("r2_wo"))
    A("s_lshr_b32 s75, s%d, 3" % su)
    A("s_and_b32 s76, s%d, 7" % su)
    srd(84, P_WO, 0, 448 * 448 * 2)
    A("s_mov_b32 s77, 896")
    A("s_mov_b32 s78, 28")
    A("s_mov_b32 s79, 4")
    A("s_mov_b32 s80, 32")
    A("s_mov_b32 s81, 0x%x" % WO_OFF)
    A("s_mov_b32 s82, 1")
    A.label(L("r2_go"))
    srd(88, P_WS, 0, W2_OFF + W2_SZ)
    A("s_lshl_b32 s83, s75, 1")
    A("s_mul_i32 s83, s83, s80")
    A("s_lshl_b32 s74, s76, 2")
    A("s_add_u32 s83, s83, s74")
    A("s_lshl_b32 s83, s83, 10")
    A("s_add_u32 s81, s81, s83")
    A("s_lshl_b32 s80, s80, 10")
    A("s_add_u32 s80, s81, s80")
    A("v_and_b32 v%d, 7, v%d" % (RL, lane))
    A("v_bfe_u32 v%d, v%d, 3, 1" % (RL + 1, lane))
    A("v_lshrrev_b32 v%d, 4, v%d" % (RL + 2, lane))
    A("v_add_u32 v%d, s74, v%d" % (RL + 3, RL + 2))
    A("v_lshrrev_b32 v%d, 1, v%d" % (RL + 4, RL + 3))
    A("v_mul_lo_u32 v%d, v%d, s78" % (RL + 4, RL + 4))
    A("v_and_b32 v%d, 1, v%d" % (RL + 5, RL + 3))
    A("v_lshl_add_u32 v%d, v%d, 4, v%d" % (RL + 4, RL + 5, RL + 4))
    A("v_mul_lo_u32 v%d, v%d, s79" % (RL + 6, RL + 1))
    A("v_add_u32 v%d, v%d, v%d" % (RL + 4, RL + 4, RL + 6))
    A("v_mul_lo_u32 v%d, v%d, s77" % (RL + 4, RL + 4))
    A("v_lshl_add_u32 v%d, v%d, 4, v%d" % (RL + 4, RL, RL + 4))
    A("s_lshl_b32 s83, s75, 7")
    A("v_add_u32 v%d, s83, v%d" % (RL + 4, RL + 4))
    A("s_sub_u32 s83, 12, s79")
    A("s_mul_i32 s83, s83, s77")
    A("v_add_u32 v%d, s83, v%d" % (RL + 6, RL + 4))
    A("v_and_b32 v%d, v%d, v%d" % (RL + 5, RL + 5, RL + 1))
    A("v_and_b32 v%d, s82, v%d" % (RL + 5, RL + 5))
    A("v_mov_b32 v%d, 0x7f000000" % (RL + 7))
    A("v_cmp_eq_u32 vcc, 1, v%d" % (RL + 5))
    A("s_lshl_b32 s78, s77, 1")
    A("s_add_u32 s79, s78, s77")
    A("v_cndmask_b32 v%d, v%d, v%d, vcc" % (RL + 6, RL + 6, RL + 7))
    R0 = RL + 8
    for grp, vo in ((0, RL + 4), (1, RL + 6)):
        for i, so in enumerate(("0", "s77", "s78", "s79")):
            A("buffer_load_dwordx4 %s, v%d, s[84:87], %s offen" % (vr(R0 + 4 * (grp * 4 + i), 4), vo, so))
    if mid: mid()
    A("s_mov_b32 s74, 0x05040100")
    A("s_mov_b32 s75, 0x07060302")
    A("v_lshrrev_b32 v%d, 2, v%d" % (RL + 3, RL))
    A("v_lshlrev_b32 v%d, 12, v%d" % (RL + 3, RL + 3))
    A("v_lshl_add_u32 v%d, v%d, 10, v%d" % (RL + 3, RL + 2, RL + 3))
    A("v_lshl_add_u32 v%d, v%d, 9, v%d" % (RL + 3, RL + 1, RL + 3))
    A("v_and_b32 v%d, 3, v%d" % (RL + 5, RL))
    A("v_lshl_add_u32 v%d, v%d, 7, v%d" % (RL + 3, RL + 5, RL + 3))
    A("v_add_u32 v%d, s%d, v%d" % (RL + 3, scr, RL + 3))
    A("v_add_u32 v%d, s%d, v%d" % (RL + 1, scr, lane16))
    O0 = R0 + 32
    A("s_waitcnt vmcnt(0)")
    for i in range(8):
        sel = "s75" if (i & 1) else "s74"
        for p in range(4):
            A("v_perm_b32 v%d, v%d, v%d, %s" % (O0 + 4 * i + p, R0 + 4 * (2 * p + 1) + (i >> 1), R0 + 4 * (2 * p) + (i >> 1), sel))
    for i in range(8):
        A("ds_write_b128 v%d, %s offset:%d" % (RL + 3, vr(O0 + 4 * i, 4), 16 * i))
    A("s_waitcnt lgkmcnt(0)")
    for q in range(8):
        A("ds_read_b128 %s, v%d offset:%d" % (vr(O0 + 4 * q, 4), RL + 1, 1024 * q))
    for q in range(8):
        A("s_waitcnt lgkmcnt(%d)" % (7 - q))
        A("buffer_store_dwordx4 %s, v%d, s[88:91], %s offen offset:%d%s" % (vr(O0 + 4 * q, 4), lane16, "s81" if q < 4 else "s80", 1024 * (q & 3), " #plain" if plain else ""))


def emit_rl_decode(L, su, RL, lane):
    A("s_min_u32 s74, s%d, 895" % su)
    A("s_cmp_lt_u32 s74, 112")
    A("s_cbranch_scc1 %s" % L("rl_wo"))
    A("s_cmp_lt_u32 s74, 504")
    A("s_cbranch_scc1 %s" % L("rl_w1"))
    A("s_sub_u32 s74, s74, 504")
    A("s_mul_i32 s75, s74, 2341")
    A("s_lshr_b32 s75, s75, 16")
    A("s_mul_i32 s76, s75, 28")
    A("s_sub_u32 s76, s74, s76")
    srd(84, P_W2, 0, 1792 * 448 * 2)
    A("s_mov_b32 s77, 896")
    A("s_mov_b32 s78, 32")
    A("s_mov_b32 s79, 4")
    A("s_mul_i32 s80, s75, 112")
    A("s_mov_b32 s81, 0x%x" % W2_OFF)
    A("s_mov_b32 s82, 0")
    A("s_branch %s" % L("rl_go"))
    A.label(L("rl_w1"))
    A("s_sub_u32 s74, s74, 112")
    A("s_mul_i32 s75, s74, 9363")
    A("s_lshr_b32 s75, s75, 16")
    A("s_mul_i32 s76, s75, 7")
    A("s_sub_u32 s76, s74, s76")
    srd(84, P_W1, 0, 448 * 1792 * 2)
    A("s_mov_b32 s77, 3584")
    A("s_mov_b32 s78, 32")
    A("s_mov_b32 s79, 8")
    A("s_mul_i32 s80, s75, 28")
    A("s_mov_b32 s81, 0x%x" % W1_OFF)
    A("s_mov_b32 s82, 0")
    A("s_branch %s" % L("rl_go"))
    A.label(L("rl_wo"))
    A("s_lshr_b32 s75, s74, 3")
    A("s_and_b32 s76, s74, 7")
    srd(84, P_WO, 0, 448 * 448 * 2)
    A("s_mov_b32 s77, 896")
    A("s_mov_b32 s78, 28")
    A("s_mov_b32 s79, 4")
    A("s_lshl_b32 s80, s75, 5")
    A("s_mov_b32 s81, 0x%x" % WO_OFF)
    A("s_mov_b32 s82, 1")
    A.label(L("rl_go"))
    srd(88, P_WS, 0, W2_OFF + W2_SZ)
    A("s_cmp_ge_u32 s%d, 896" % su)
    A("s_cselect_b32 s86, 0, s86")
    A("s_cselect_b32 s90, 0, s90")
    A("s_lshl_b32 s83, s76, 2")
    A("s_add_u32 s80, s80, s83")
    A("s_lshl_b32 s80, s80, 10")
    A("s_add_u32 s81, s81, s80")
    A("v_and_b32 v%d, 7, v%d" % (RL, lane))
    A("v_bfe_u32 v%d, v%d, 3, 1" % (RL + 1, lane))
    A("v_lshrrev_b32 v%d, 4, v%d" % (RL + 2, lane))
    A("v_add_u32 v%d, s83, v%d" % (RL + 2, RL + 2))
    A("v_lshrrev_b32 v%d, 1, v%d" % (RL + 3, RL + 2))
    A("v_mul_lo_u32 v%d, v%d, s78" % (RL + 3, RL + 3))
    A("v_and_b32 v%d, 1, v%d" % (RL + 4, RL + 2))
    A("v_lshl_add_u32 v%d, v%d, 4, v%d" % (RL + 3, RL + 4, RL + 3))
    A("v_mul_lo_u32 v%d, v%d, s79" % (RL + 5, RL + 1))
    A("v_add_u32 v%d, v%d, v%d" % (RL + 3, RL + 3, RL + 5))
    A("v_mul_lo_u32 v%d, v%d, s77" % (RL + 3, RL + 3))
    A("v_lshl_add_u32 v%d, v%d, 3, v%d" % (RL + 3, RL, RL + 3))
    A("s_lshl_b32 s83, s75, 6")
    A("v_add_u32 v%d, s83, v%d" % (RL + 3, RL + 3))
    A("s_sub_u32 s83, 12, s79")
    A("s_mul_i32 s83, s83, s77")
    A("v_add_u32 v%d, s83, v%d" % (RL + 5, RL + 3))
    A("v_and_b32 v%d, v%d, v%d" % (RL + 4, RL + 4, RL + 1))
    A("v_and_b32 v%d, s82, v%d" % (RL + 4, RL + 4))
    A("v_mov_b32 v%d, 0x7f000000" % (RL + 6))
    A("v_cmp_eq_u32 vcc, 1, v%d" % (RL + 4))
    A("s_lshl_b32 s78, s77, 1")
    A("s_add_u32 s79, s78, s77")
    A("v_cndmask_b32 v%d, v%d, v%d, vcc" % (RL + 5, RL + 5, RL + 6))

def emit_rl_body(RL, lane, lane16, scratch_sreg, plain=False):
    for grp, vo in ((0, RL + 3), (1, RL + 5)):
        for i, so in enumerate(("0", "s77", "s78", "s79")):
            A("buffer_load_dwordx2 %s, v%d, s[84:87], %s offen" % (vr(RL + 8 + 2 * (grp * 4 + i), 2), vo, so))
    A("s_mov_b32 s74, 0x05040100")
    A("s_mov_b32 s75, 0x07060302")
    A("v_lshlrev_b32 v%d, 6, v%d" % (RL, lane))
    A("v_add_u32 v%d, s%d, v%d" % (RL, scratch_sreg, RL))
    A("v_add_u32 v%d, s%d, v%d" % (RL + 1, scratch_sreg, lane16))
    A("s_waitcnt vmcnt(0)")
    for i in range(4):
        sel = "s75" if (i & 1) else "s74"
        for p in range(4):
            A("v_perm_b32 v%d, v%d, v%d, %s" % (RL + 24 + 4 * i + p, RL + 8 + 2 * (2 * p + 1) + (i >> 1), RL + 8 + 2 * (2 * p) + (i >> 1), sel))
    for i in range(4):
        A("ds_write_b128 v%d, %s offset:%d" % (RL, vr(RL + 24 + 4 * i, 4), 16 * i))
    A("s_waitcnt lgkmcnt(0)")
    for i in range(4):
        A("ds_read_b128 %s, v%d offset:%d" % (vr(RL + 24 + 4 * i, 4), RL + 1, 1024 * i))
    for i in range(4):
        A("s_waitcnt lgkmcnt(%d)" % (3 - i))
        A("buffer_store_dwordx4 %s, v%d, s[88:91], s81 offen offset:%d%s" % (vr(RL + 24 + 4 * i, 4), lane16, 1024 * i, " #plain" if plain else ""))

def gen_lngemm(kind):
    name = "qkv_kernel" if kind == "qkv" else "mlp1_kernel"
    NCT = 6 if kind == "qkv" else 7
    MODL = 57344
    kernel_begin(name, 256)
    L = lambda s: "%s_%s" % (name, s)
    A("v_lshrrev_b32 v1, 6, v0")
    A("v_and_b32 v2, 63, v0")
    A("v_readfirstlane_b32 s40, v1")
    A("s_lshr_b32 s43, s2, 3")
    A("s_bfe_u32 s41, s2, 0x20001")
    A("s_lshl_b32 s41, s41, 3")
    A("s_and_b32 s42, s43, 7")
    A("s_add_u32 s41, s41, s42")
    A("s_and_b32 s42, s2, 1")
    A("s_lshl_b32 s42, s42, 2")
    A("s_lshr_b32 s43, s43, 3")
    A("s_add_u32 s42, s42, s43")
    A("v_and_b32 v3, 7, v2")
    A("v_lshrrev_b32 v4, 3, v2")
    A("s_waitcnt lgkmcnt(0)")
    stamp()
    if kind == "qkv":
        srd(44, P_X, 0, X_SZ)
        srd(48, P_WS, MOD_OFF, 3584)
        srd(52, P_WS, WQKV_OFF, WQKV_SZ)
    else:
        srd(44, P_WS, X2_OFF, X_SZ)
        srd(48, P_WS, MOD_OFF + 1344 * 4, 3584)
        srd(52, P_WS, W1_OFF, W1_SZ)
    A("s_lshl_b32 s60, s41, 6")
    A("s_lshl_b32 s61, s40, 3")
    A("s_add_u32 s60, s60, s61")
    A("v_add_u32 v5, s60, v3")
    A("v_mul_u32_u24 v5, 896, v5")
    A("v_lshl_add_u32 v5, v4, 4, v5")
    XR = 8
    for i in range(7):
        A("buffer_load_dwordx4 %s, v5, s[44:47], 0 offen offset:%d" % (vr(XR + 4 * i, 4), 128 * i))
        if os.environ.get("LAT") and i == 0:
            stamp()
            A("s_waitcnt vmcnt(0)")
            stamp()
    if os.environ.get("LAT"):
        stamp()
        A("s_waitcnt vmcnt(0)")
        stamp()
    A("v_lshlrev_b32 v6, 4, v0")
    A("buffer_load_dwordx4 v[36:39], v6, s[48:51], 0 offen")
    WR = 128
    A("v_lshlrev_b32 v7, 4, v2")
    A("s_mul_i32 s62, s42, %d" % NCT)
    A("s_add_u32 s62, s62, s40")
    A("s_mul_i32 s63, s62, %d" % (28 * 1024))
    A("s_lshr_b32 s60, s40, 2")
    A("s_mul_i32 s60, s60, 28672")
    A("s_and_b32 s61, s40, 3")
    A("s_lshl_b32 s61, s61, 7")
    A("s_add_u32 s60, s60, s61")
    A("s_barrier")
    XF = 40
    def ln_phase(withw, mode="A"):
        NPRE = int(os.environ.get("NPRE", "8"))
        PER = int(os.environ.get("PER", "18"))
        if os.environ.get("SPLIT", "0") == "1":
            NPRE, PER = (28, 1000) if mode == "A" else (0, 1000)
        wl = []
        for k in range(28):
            wl.append("buffer_load_dwordx4 %s, v7, s[52:55], s63 offen offset:%d" % (vr(WR + 4 * k, 4), 1024 * (k & 3)))
            if (k & 3) == 3:
                wl[-1] += "\ns_add_u32 s63, s63, 4096"
        if not withw: wl = []
        for k in range(min(NPRE, len(wl))):
            A(wl.pop(0))
        A("s_waitcnt vmcnt(%d)" % (NPRE if withw else 0))
        stamp()
        cnt = [0]
        def V(t):
            A(t)
            cnt[0] += 1
            if wl and cnt[0] % PER == 0:
                A(wl.pop(0))
        V("v_add_u32 v6, %d, v6" % MODL)
        V("ds_write_b128 v6, v[36:39]")
        for r in range(28):
            V("v_lshlrev_b32 v%d, 16, v%d" % (XF + 2 * r, XR + r))
            V("v_and_b32 v%d, 0xffff0000, v%d" % (XF + 2 * r + 1, XR + r))
        pr = lambda r: vr(r, 2)
        V("v_pk_add_f32 v[96:97], %s, %s" % (pr(XF), pr(XF + 2)))
        V("v_pk_add_f32 v[98:99], %s, %s" % (pr(XF + 4), pr(XF + 6)))
        for e in range(4, 28):
            a = 96 + 2 * (e & 1)
            V("v_pk_add_f32 %s, %s, %s" % (pr(a), pr(a), pr(XF + 2 * e)))
        V("v_pk_add_f32 v[96:97], v[96:97], v[98:99]")
        V("v_add_f32 v96, v96, v97")
        def xreduce(r, t1, t2):
            V("s_nop 1")
            V("v_add_f32_dpp v%d, v%d, v%d row_ror:8 row_mask:0xf bank_mask:0xf" % (t1, r, r))
            V("v_mov_b32 v%d, v%d" % (t2, t1))
            V("s_nop 1")
            V("v_permlane16_swap_b32 v%d, v%d" % (t1, t2))
            V("s_nop 1")
            V("v_add_f32 v%d, v%d, v%d" % (t1, t1, t2))
            V("v_mov_b32 v%d, v%d" % (t2, t1))
            V("s_nop 1")
            V("v_permlane32_swap_b32 v%d, v%d" % (t1, t2))
            V("s_nop 1")
            V("v_add_f32 v%d, v%d, v%d" % (r, t1, t2))
        xreduce(96, 100, 101)
        V("v_mul_f32 v96, 0x%08x, v96" % f2u(-1.0 / 448))
        V("v_mov_b32 v97, v96")
        for e in range(28):
            V("v_pk_add_f32 %s, %s, v[96:97]" % (pr(XF + 2 * e), pr(XF + 2 * e)))
        V("v_pk_mul_f32 v[98:99], %s, %s" % (pr(XF), pr(XF)))
        V("v_pk_mul_f32 v[100:101], %s, %s" % (pr(XF + 2), pr(XF + 2)))
        for e in range(2, 28):
            a = 98 + 2 * (e & 1)
            V("v_pk_fma_f32 %s, %s, %s, %s" % (pr(a), pr(XF + 2 * e), pr(XF + 2 * e), pr(a)))
        V("v_pk_add_f32 v[98:99], v[98:99], v[100:101]")
        V("v_add_f32 v97, v98, v99")
        xreduce(97, 100, 101)
        V("v_mov_b32 v98, 0x%08x" % f2u(1e-5))
        V("v_fmac_f32 v98, 0x%08x, v97" % f2u(1.0 / 448))
        V("v_rsq_f32 v98, v98")
        V("v_lshlrev_b32 v5, 5, v4")
        V("v_add_u32 v5, %d, v5" % MODL)
        V("v_lshrrev_b32 v6, 1, v4")
        V("v_lshlrev_b32 v6, 10, v6")
        V("v_and_b32 v36, 1, v4")
        V("v_lshl_add_u32 v6, v36, 9, v6")
        V("v_lshl_add_u32 v6, v3, 4, v6")
        V("v_add_u32 v6, s60, v6")
        V("v_mov_b32 v99, v98")
        if os.environ.get("SPLIT", "0") == "1" and mode == "B":
            while wl: A(wl.pop(0))
        A("s_waitcnt lgkmcnt(0)")
        stamp()
        A("s_barrier")
        stamp()
        def rdmod(i):
            b = 8 + 16 * (i & 1)
            V("ds_read_b128 %s, v5 offset:%d" % (vr(b, 4), 256 * i))
            V("ds_read_b128 %s, v5 offset:%d" % (vr(b + 4, 4), 256 * i + 16))
            V("ds_read_b128 %s, v5 offset:%d" % (vr(b + 8, 4), 1792 + 256 * i))
            V("ds_read_b128 %s, v5 offset:%d" % (vr(b + 12, 4), 1792 + 256 * i + 16))
        rdmod(0)
        for i in range(7):
            b = 8 + 16 * (i & 1)
            for j in range(4):
                V("v_pk_mul_f32 %s, %s, v[98:99]" % (pr(XF + 8 * i + 2 * j), pr(XF + 8 * i + 2 * j)))
            if i + 1 < 7:
                A("s_waitcnt lgkmcnt(1)" if i > 0 else "s_waitcnt lgkmcnt(0)")
                rdmod(i + 1)
            else:
                A("s_waitcnt lgkmcnt(0)")
            for j in range(4):
                V("v_pk_fma_f32 %s, %s, %s, %s" % (pr(XF + 8 * i + 2 * j), pr(XF + 8 * i + 2 * j), pr(b + 8 + 2 * j), pr(b + 2 * j)))
            hb = 100 + 4 * (i & 1)
            for p in range(4):
                V("v_cvt_pk_bf16_f32 v%d, v%d, v%d" % (hb + p, XF + 8 * i + 2 * p, XF + 8 * i + 2 * p + 1))
            V("ds_write_b128 v6, %s offset:%d" % (vr(hb, 4), 4096 * i))
        while wl: A(wl.pop(0))
        A("s_waitcnt lgkmcnt(0)")
        stamp()
        A("s_barrier")
        stamp()
    A("s_cmp_ge_u32 s40, %d" % NCT)
    A("s_cbranch_scc1 %s" % L("now"))
    n0 = NST[0]
    if os.environ.get("SPLIT", "0") == "1":
        A("s_cmp_ge_u32 s40, %d" % int(os.environ.get("SPLITW", "3")))
        A("s_cbranch_scc1 %s" % L("modeB"))
        ln_phase(True, "A")
        A("s_branch %s" % L("gemm"))
        A.label(L("modeB"))
        NST[0] = n0
        ln_phase(True, "B")
    else:
        ln_phase(True)
    A("s_branch %s" % L("gemm"))
    A.label(L("now"))
    n1 = NST[0]; NST[0] = n0
    ln_phase(False)
    if kind == "qkv" and os.environ.get("SIDE", "0") == "1":
        A("s_lshl_b32 s72, s2, 1")
        A("s_add_u32 s72, s72, s40")
        A("s_sub_u32 s72, s72, 6")
        A("s_lshl_b32 s92, s40, 12")
        A("s_add_u32 s92, s92, %d" % (57344 + 8192 - 6 * 4096))
        A.label(L("side"))
        emit_rl_decode(L, 72, 192, 2)
        emit_rl_body(192, 2, 7, 92, plain=(os.environ.get("SIDE_PLAIN", "0") == "1"))
        A("s_add_u32 s72, s72, 512")
        A("s_cmp_lt_u32 s72, 896")
        A("s_cbranch_scc1 %s" % L("side"))
    A("s_endpgm")
    A.label(L("gemm"))
    ACC = 8
    HB = 40
    def gemm(transposed):
        NPF = 3
        def rd(s):
            b = HB + 8 * (s % 4)
            A("ds_read_b128 %s, v7 offset:%d" % (vr(b, 4), s * 1024))
            A("ds_read_b128 %s, v7 offset:%d" % (vr(b + 4, 4), 28672 + s * 1024))
        for s in range(NPF):
            rd(s)
        for s in range(28):
            if s + NPF < 28:
                rd(s + NPF)
                A("s_waitcnt lgkmcnt(%d)" % (2 * NPF))
            else:
                A("s_waitcnt lgkmcnt(%d)" % (2 * (27 - s)))
            b = HB + 8 * (s % 4)
            A("s_waitcnt vmcnt(%d)" % (27 - s))
            for T in range(2):
                c = "0" if s == 0 else vr(ACC + 16 * T, 16)
                w = vr(WR + 4 * s, 4); h = vr(b + 4 * T, 4)
                if transposed:
                    A("v_mfma_f32_32x32x16_bf16 %s, %s, %s, %s" % (vr(ACC + 16 * T, 16), w, h, c))
                else:
                    A("v_mfma_f32_32x32x16_bf16 %s, %s, %s, %s" % (vr(ACC + 16 * T, 16), h, w, c))
        nops(16)
    def pack_store(T, srdreg, soff):
        for p in range(8):
            A("v_cvt_pk_bf16_f32 v%d, v%d, v%d" % (72 + p, ACC + 16 * T + 2 * p, ACC + 16 * T + 2 * p + 1))
        A("buffer_store_dwordx4 v[72:75], v7, s[%d:%d], %s offen" % (srdreg, srdreg + 3, soff))
        A("buffer_store_dwordx4 v[76:79], v7, s[%d:%d], %s offen offset:1024" % (srdreg, srdreg + 3, soff))
        A("s_nop 1")
    if kind == "qkv":
        srd(56, P_WS, Q_OFF, 3 * QKV_SZ)
        A("s_lshl_b32 s64, s42, 1")
        A("s_cmp_ge_u32 s40, 3")
        A("s_cselect_b32 s65, 1, 0")
        A("s_add_u32 s64, s64, s65")
        A("s_mul_i32 s65, s65, 3")
        A("s_sub_u32 s65, s40, s65")
        A("s_mul_i32 s66, s65, 0x%x" % QKV_SZ)
        A("s_lshl_b32 s67, s64, 17")
        A("s_add_u32 s66, s66, s67")
        A("s_lshl_b32 s67, s41, 12")
        A("s_add_u32 s66, s66, s67")
        A("s_add_u32 s67, s66, 2048")
        A("s_cmp_eq_u32 s65, 2")
        A("s_cbranch_scc1 %s" % L("v"))
        gemm(True)
        stamp()
        A("s_cmp_eq_u32 s65, 1")
        A("s_cbranch_scc1 %s" % L("kst"))
        import math
        A("s_mov_b32 s68, 0x%08x" % f2u(math.log2(math.e) / math.sqrt(28.0)))
        for r in range(32):
            A("v_mul_f32 v%d, s68, v%d" % (ACC + r, ACC + r))
        A.label(L("kst"))
        pack_store(0, 56, "s66")
        pack_store(1, 56, "s67")
        n0 = NST[0]
        stamp_flush()
        A("s_endpgm")
        NST[0] = n0
        A.label(L("v"))
        gemm(False)
        stamp()
        A("v_and_b32 v80, 31, v2")
        A("v_cmp_eq_u32 vcc, 28, v80")
        A("v_mov_b32 v81, 1.0")
        A("s_nop 1")
        for r in range(32):
            A("v_cndmask_b32 v%d, v%d, v81, vcc" % (ACC + r, ACC + r))
        pack_store(0, 56, "s66")
        pack_store(1, 56, "s67")
    else:
        srd(56, P_WS, H1_OFF, H1_SZ)
        gemm(True)
        stamp()
        for r in range(32):
            A("v_mul_f32 v%d, 0xbfb8aa3b, v%d" % (80 + r, ACC + r))
        for r in range(32):
            A("v_exp_f32 v%d, v%d" % (80 + r, 80 + r))
        for r in range(32):
            A("v_add_f32 v%d, 1.0, v%d" % (80 + r, 80 + r))
        for r in range(32):
            A("v_rcp_f32 v%d, v%d" % (80 + r, 80 + r))
        for r in range(32):
            A("v_mul_f32 v%d, v%d, v%d" % (ACC + r, ACC + r, 80 + r))
        A("s_lshl_b32 s66, s41, 1")
        A("s_mul_i32 s66, s66, %d" % (112 * 1024))
        A("s_lshl_b32 s67, s62, 11")
        A("s_add_u32 s66, s66, s67")
        A("s_add_u32 s67, s66, %d" % (112 * 1024))
        pack_store(0, 56, "s66")
        pack_store(1, 56, "s67")
    stamp_flush()
    kernel_end(name)
    kernel_desc(name, 240)
    return (name, 256, 512, 57344 + 8192 + 8192)

import struct
def f2u(f):
    return struct.unpack("<I", struct.pack("<f", f))[0]

def gen_attn():
    name = "attn_kernel"
    kernel_begin(name, 256)
    L = lambda s: "%s_%s" % (name, s)
    FLAG = 131072
    A("v_lshrrev_b32 v1, 6, v0")
    A("v_and_b32 v2, 63, v0")
    A("v_readfirstlane_b32 s40, v1")
    A("s_and_b32 s41, s2, 15")
    A("s_lshr_b32 s42, s2, 4")
    A("v_lshlrev_b32 v3, 4, v2")
    HELP = os.environ.get("HELP", "1") == "1"
    if HELP:
        A("s_nop 1")
        A("s_cmp_eq_u32 s40, 4")
        A("s_cbranch_scc1 %s" % L("helper"))
    A("v_mov_b32 v4, %d" % FLAG)
    A("v_mov_b32 v5, 0")
    A("ds_write_b32 v4, v5")
    A("s_waitcnt lgkmcnt(0)")
    srd(44, P_WS, Q_OFF, QKV_SZ)
    srd(48, P_WS, K_OFF, QKV_SZ)
    srd(52, P_WS, V_OFF, QKV_SZ)
    srd(56, P_WS, O_OFF, O_SZ)
    A("s_lshl_b32 s60, s42, 2")
    A("s_add_u32 s60, s60, s40")
    A("s_lshl_b32 s61, s41, 6")
    A("s_add_u32 s61, s61, s60")
    A("s_lshl_b32 s61, s61, 11")
    QF = 8
    A("buffer_load_dwordx4 %s, v3, s[44:47], s61 offen" % vr(QF, 4))
    A("buffer_load_dwordx4 %s, v3, s[44:47], s61 offen offset:1024" % vr(QF + 4, 4))
    A("s_lshl_b32 s63, s40, 11")
    def dma_init():
        A("s_lshl_b32 s62, s41, 17")
        A("s_add_u32 s62, s62, s63")
        A("s_mov_b32 s64, 0")
    def dma():
        A("s_add_u32 s65, s64, s63")
        A("s_mov_b32 m0, s65")
        A("s_add_u32 s65, s65, 8192")
        A("buffer_load_dwordx4 v3, s[48:51], s62 offen lds")
        A("buffer_load_dwordx4 v3, s[48:51], s62 offen offset:1024 lds")
        A("s_mov_b32 m0, s65")
        A("s_add_u32 s64, s64, 16384")
        A("buffer_load_dwordx4 v3, s[52:55], s62 offen lds")
        A("buffer_load_dwordx4 v3, s[52:55], s62 offen offset:1024 lds")
        A("s_add_u32 s62, s62, 8192")
        A("s_and_b32 s64, s64, 0xffff")
    O = 16
    S = [32, 48]; P = [64, 72]; KF = [80, 88]; VF = [96, 104]; NM = 112
    VC, VN = 4, 5
    def mfma(d, a, b, c):
        A("v_mfma_f32_32x32x16_bf16 %s, %s, %s, %s" % (vr(d, 16), vr(a, 4), vr(b, 4), c if isinstance(c, str) else vr(c, 16)))
    CH = int(os.environ.get("ATT_CH", "8"))
    NCH = 64 // CH
    CB = CH * 2048
    NSL = 4
    SLB = 2 * CB
    PW = CB // 4 // 1024
    vmq = ["q", "q"]
    def VM(l, tag):
        A(l); vmq.append(tag)
    def vmwait(tag, extra=""):
        idx = max(i for i, t in enumerate(vmq) if t == tag)
        A("s_waitcnt vmcnt(%d) %s" % (len(vmq) - 1 - idx, extra))
    A("s_mul_i32 s69, s40, %d" % (CB // 4))
    A("s_lshl_b32 s70, s41, 17")
    A("s_add_u32 s70, s70, s69")
    def fdma(c):
        out = []
        slot = (c % NSL) * SLB
        for op, sr_ in ((0, 48), (1, 52)):
            for p in range(PW):
                if p % 4 == 0:
                    out.append(("s_add_u32 s71, s69, %d" % (slot + op * CB + p * 1024), None))
                    out.append(("s_mov_b32 m0, s71", None))
                    out.append(("s_add_u32 s72, s70, %d" % (c * CB + p * 1024), None))
                out.append(("buffer_load_dwordx4 v3, s[%d:%d], s72 offen offset:%d lds" % (sr_, sr_ + 3, 1024 * (p % 4)), "c%d" % c))
        return out
    pend = []
    def drip(n):
        k = 0
        while pend and k < n:
            l, tag = pend.pop(0)
            if tag: VM(l, tag); k += 1
            else: A(l)
    pend += fdma(0); drip(1000)
    pend += fdma(1) + fdma(2)
    for r in range(16):
        A("v_mov_b32 v%d, 0" % (O + r))
    for r in range(8):
        A("v_mov_b32 v%d, 0" % (P[1] + r))
        A("v_mov_b32 v%d, 0" % (VF[1] + r))
    A("v_add_u32 v4, 0x10000, v3")
    def lds(dst, addr):
        if addr >= 65536:
            A("ds_read_b128 %s, v4 offset:%d" % (vr(dst, 4), addr - 65536))
        else:
            A("ds_read_b128 %s, v3 offset:%d" % (vr(dst, 4), addr))
    def kaddr(i): return ((i // CH) % NSL) * SLB + (i % CH) * 2048
    def vaddr(i): return ((i // CH) % NSL) * SLB + CB + (i % CH) * 2048
    stamp()
    vmwait("c0")
    A("s_barrier")
    stamp()
    drip(2 * PW)
    lds(KF[0], kaddr(0)); lds(KF[0] + 4, kaddr(0) + 1024)
    lds(KF[1], kaddr(1)); lds(KF[1] + 4, kaddr(1) + 1024)
    A("s_waitcnt lgkmcnt(2)")
    mfma(S[0], KF[0], QF, "0")
    mfma(S[0], KF[0] + 4, QF + 4, S[0])
    nops(16)
    s0 = S[0]
    A("v_max3_f32 v6, v%d, v%d, v%d" % (s0, s0 + 1, s0 + 2))
    for r in range(3, 15, 2):
        A("v_max3_f32 v6, v6, v%d, v%d" % (s0 + r, s0 + r + 1))
    A("v_max_f32 v6, v6, v%d" % (s0 + 15))
    A("v_mov_b32 v7, v6")
    A("s_nop 1")
    A("v_permlane32_swap_b32 v6, v7")
    A("s_nop 1")
    A("v_max_f32 v6, v6, v7")
    for r in range(16):
        A("v_sub_f32 v%d, 0, v6" % (NM + r))
    for r in range(16):
        A("v_sub_f32 v%d, v%d, v6" % (s0 + r, s0 + r))
    stamp()
    for i in range(64):
        c, t = i // CH, i % CH
        b = i & 1
        sc, sn = S[b], S[b ^ 1]
        pc, pp = P[b], P[b ^ 1]
        kn = KF[b ^ 1]; kl = KF[b]; vl = VF[b]; vp = VF[b ^ 1]
        if t == CH - 2 and c + 1 < NCH:
            assert not pend
            vmwait("c%d" % (c + 1), "lgkmcnt(0)")
            A("s_barrier")
            if c + 3 < NCH:
                pend += fdma(c + 3)
        else:
            A("s_waitcnt lgkmcnt(0)")
        def expcvt(q):
            for r in range(4 * q, 4 * q + 4):
                A("v_exp_f32 v%d, v%d" % (sc + r, sc + r))
            A("v_cvt_pk_bf16_f32 v%d, v%d, v%d" % (pc + 2 * q, sc + 4 * q, sc + 4 * q + 1))
            A("v_cvt_pk_bf16_f32 v%d, v%d, v%d" % (pc + 2 * q + 1, sc + 4 * q + 2, sc + 4 * q + 3))
        if i + 1 < 64: mfma(sn, kn, QF, NM)
        if i + 2 < 64:
            lds(kl, kaddr(i + 2)); lds(kl + 4, kaddr(i + 2) + 1024)
        expcvt(0)
        if i > 0: mfma(O, vp, pp, O)
        lds(vl, vaddr(i)); lds(vl + 4, vaddr(i) + 1024)
        drip(1)
        expcvt(1)
        if i + 1 < 64: mfma(sn, kn + 4, QF + 4, sn)
        drip(1)
        expcvt(2)
        if i > 0: mfma(O, vp + 4, pp + 4, O)
        expcvt(3)
    assert not pend
    stamp()
    A("s_waitcnt lgkmcnt(0)")
    mfma(O, VF[1], P[1], O)
    mfma(O, VF[1] + 4, P[1] + 4, O)
    nops(16)
    A("v_mov_b32 v6, v%d" % (O + 12))
    A("v_mov_b32 v7, v%d" % (O + 12))
    A("s_nop 1")
    A("v_permlane32_swap_b32 v6, v7")
    A("v_and_b32 v6, 0x7fffffff, v%d" % O)
    for r in range(1, 16):
        A("v_add_f32 v6, v6, abs(v%d)" % (O + r))
    A("v_add_f32 v6, v6, v7")
    A("v_mov_b32 v1, 0x7b800000")
    A("v_cmp_nlt_f32 vcc, v6, v1")
    A("s_nop 3")
    A("s_cmp_eq_u64 vcc, 0")
    A("s_cbranch_scc1 %s" % L("ok"))
    A("v_mov_b32 v4, %d" % FLAG)
    A("v_mov_b32 v5, 1")
    A("ds_write_b32 v4, v5")
    A.label(L("ok"))
    A("v_mov_b32 v4, %d" % FLAG)
    A("s_waitcnt lgkmcnt(0)")
    A("s_barrier")
    A("ds_read_b32 v5, v4")
    A("s_waitcnt lgkmcnt(0)")
    A("v_readfirstlane_b32 s68, v5")
    A("s_nop 3")
    A("s_cmp_eq_u32 s68, 0")
    A("s_cbranch_scc1 %s" % L("epi"))
    stamp()
    A("s_barrier")
    dma_init()
    dma(); dma(); dma()
    S0 = 32; KF0 = 48; VF0 = 56; P0 = 64
    for r in range(16):
        A("v_mov_b32 v%d, 0" % (O + r))
    A("v_mov_b32 v72, 0xff800000")
    A("s_mov_b32 s66, 0")
    A("s_mov_b32 s67, 0")
    A.label(L("loop"))
    A("s_cmp_ge_u32 s66, 13")
    A("s_cbranch_scc1 %s" % L("w0"))
    A("s_waitcnt vmcnt(8)")
    A("s_barrier")
    dma()
    A("s_branch %s" % L("go"))
    A.label(L("w0"))
    A("s_waitcnt vmcnt(0)")
    A("s_barrier")
    A.label(L("go"))
    A("v_add_u32 v4, s67, v3")
    for t in range(4):
        A("ds_read_b128 %s, v4 offset:%d" % (vr(KF0, 4), 2048 * t))
        A("ds_read_b128 %s, v4 offset:%d" % (vr(KF0 + 4, 4), 2048 * t + 1024))
        A("ds_read_b128 %s, v4 offset:%d" % (vr(VF0, 4), 8192 + 2048 * t))
        A("ds_read_b128 %s, v4 offset:%d" % (vr(VF0 + 4, 4), 8192 + 2048 * t + 1024))
        A("s_waitcnt lgkmcnt(2)")
        mfma(S0, KF0, QF, "0")
        mfma(S0, KF0 + 4, QF + 4, S0)
        nops(16)
        A("v_max3_f32 v73, v%d, v%d, v%d" % (S0, S0 + 1, S0 + 2))
        for r in range(3, 15, 2):
            A("v_max3_f32 v73, v73, v%d, v%d" % (S0 + r, S0 + r + 1))
        A("v_max_f32 v73, v73, v%d" % (S0 + 15))
        A("v_mov_b32 v74, v73")
        A("s_nop 1")
        A("v_permlane32_swap_b32 v73, v74")
        A("s_nop 1")
        A("v_max3_f32 v73, v73, v74, v72")
        A("v_sub_f32 v74, v72, v73")
        A("v_exp_f32 v74, v74")
        A("v_mov_b32 v72, v73")
        for r in range(16):
            A("v_sub_f32 v%d, v%d, v73" % (S0 + r, S0 + r))
        for r in range(16):
            A("v_exp_f32 v%d, v%d" % (S0 + r, S0 + r))
        for r in range(16):
            A("v_mul_f32 v%d, v%d, v74" % (O + r, O + r))
        for p in range(8):
            A("v_cvt_pk_bf16_f32 v%d, v%d, v%d" % (P0 + p, S0 + 2 * p, S0 + 2 * p + 1))
        A("s_waitcnt lgkmcnt(0)")
        A("s_nop 1")
        mfma(O, VF0, P0, O)
        mfma(O, VF0 + 4, P0 + 4, O)
        nops(16)
    A("s_add_u32 s67, s67, 16384")
    A("s_and_b32 s67, s67, 0xffff")
    A("s_add_u32 s66, s66, 1")
    A("s_cmp_lt_u32 s66, 16")
    A("s_cbranch_scc1 %s" % L("loop"))
    A("v_mov_b32 v6, v%d" % (O + 12))
    A("v_mov_b32 v7, v%d" % (O + 12))
    A("s_nop 1")
    A("v_permlane32_swap_b32 v6, v7")
    A.label(L("epi"))
    A("s_nop 1")
    A("v_rcp_f32 v7, v7")
    A("s_nop 0")
    for r in range(16):
        A("v_mul_f32 v%d, v%d, v7" % (O + r, O + r))
    for p in range(8):
        A("v_cvt_pk_bf16_f32 v%d, v%d, v%d" % (64 + p, O + 2 * p, O + 2 * p + 1))
    A("s_lshl_b32 s60, s60, 5")
    A("s_lshl_b32 s61, s41, 1")
    A("s_add_u32 s60, s60, s61")
    A("s_lshl_b32 s60, s60, 10")
    A("buffer_store_dwordx4 %s, v3, s[56:59], s60 offen" % vr(64, 4))
    A("buffer_store_dwordx4 %s, v3, s[56:59], s60 offen offset:1024" % vr(68, 4))
    stamp_flush()
    if HELP:
        A("s_endpgm")
        A.label(L("helper"))
        A("s_waitcnt lgkmcnt(0)")
        A("s_mov_b32 s72, s2")
        A("s_mov_b32 s92, %d" % (131072 + 64))
        H1 = lambda s: "attn_h1_%s" % s
        H2 = lambda s: "attn_h2_%s" % s
        def mid1():
            A("s_barrier"); A("s_barrier")
        emit_rl2(H1, 72, 16, 2, 3, 92, mid=mid1, plain=False)
        A("s_add_u32 s72, s2, 256")
        A("s_cmp_ge_u32 s72, 448")
        A("s_cbranch_scc1 %s_end" % name)
        def mid2():
            A("s_barrier"); A("s_barrier")
        emit_rl2(H2, 72, 16, 2, 3, 92, mid=mid2, plain=False)
    kernel_end(name)
    kernel_desc(name, 128)
    return (name, 256, 320 if HELP else 256, 131072 + 64 + (8192 if HELP else 0))

def gen_skgemm(kind):
    name = "wo_kernel" if kind == "wo" else "mlp2_kernel"
    KS = 32 if kind == "wo" else 112
    KW = KS // 8
    kernel_begin(name, 224)
    A("v_lshrrev_b32 v1, 6, v0")
    A("v_and_b32 v2, 63, v0")
    A("v_readfirstlane_b32 s40, v1")
    A("s_and_b32 s41, s2, 31")
    A("s_lshr_b32 s42, s2, 5")
    A("v_lshlrev_b32 v3, 4, v2")
    A("s_waitcnt lgkmcnt(0)")
    if kind == "wo":
        srd(44, P_WS, O_OFF, O_SZ)
        srd(48, P_WS, WO_OFF, WO_SZ)
        srd(52, P_X, 0, X_SZ)
        srd(56, P_WS, MOD_OFF + 896 * 4, 1792)
        srd(60, P_WS, X2_OFF, X_SZ)
    else:
        srd(44, P_WS, H1_OFF, H1_SZ)
        srd(48, P_WS, W2_OFF, W2_SZ)
        srd(52, P_WS, X2_OFF, X_SZ)
        srd(56, P_WS, MOD_OFF + 2240 * 4, 1792)
        srd(60, P_OUT, 0, X_SZ)
    A("s_mul_i32 s64, s40, %d" % (KW * 1024))
    A("s_mul_i32 s65, s41, %d" % (2 * KS * 1024))
    A("s_add_u32 s65, s65, s64")
    A("s_add_u32 s66, s65, %d" % (KS * 1024))
    A("s_mul_i32 s67, s42, %d" % (2 * KS * 1024))
    A("s_add_u32 s67, s67, s64")
    A("s_add_u32 s68, s67, %d" % (KS * 1024))
    NB = min(KW, int(os.environ.get('NB', '8')))
    FB = 80
    ACC = 8
    def ld(s):
        b = FB + 16 * (s % NB)
        A("buffer_load_dwordx4 %s, v3, s[44:47], s65 offen offset:%d" % (vr(b, 4), 1024 * (s & 3)))
        A("buffer_load_dwordx4 %s, v3, s[44:47], s66 offen offset:%d" % (vr(b + 4, 4), 1024 * (s & 3)))
        A("buffer_load_dwordx4 %s, v3, s[48:51], s67 offen offset:%d" % (vr(b + 8, 4), 1024 * (s & 3)))
        A("buffer_load_dwordx4 %s, v3, s[48:51], s68 offen offset:%d" % (vr(b + 12, 4), 1024 * (s & 3)))
        if (s & 3) == 3:
            for r in (65, 66, 67, 68):
                A("s_add_u32 s%d, s%d, 4096" % (r, r))
    stamp()
    for s in range(NB):
        ld(s)
    stamp()
    issued = NB
    for s in range(KW):
        A("s_waitcnt vmcnt(%d)" % (4 * (issued - s - 1)))
        b = FB + 16 * (s % NB)
        for T in range(2):
            for C in range(2):
                acc = vr(ACC + 16 * (2 * T + C), 16)
                c = "0" if s == 0 else acc
                A("v_mfma_f32_32x32x16_bf16 %s, %s, %s, %s" % (acc, vr(b + 8 + 4 * C, 4), vr(b + 4 * T, 4), c))
        if issued < KW:
            ld(issued)
            issued += 1
    stamp()
    nops(16)
    A("v_and_b32 v4, 31, v2")
    A("v_mul_u32_u24 v4, 272, v4")
    A("v_lshrrev_b32 v5, 5, v2")
    A("v_lshl_add_u32 v4, v5, 4, v4")
    A("s_mul_i32 s69, s40, %d" % (64 * 272))
    A("v_add_u32 v4, s69, v4")
    for T in range(2):
        for C in range(2):
            for q in range(4):
                A("ds_write_b128 v4, %s offset:%d" % (vr(ACC + 16 * (2 * T + C) + 4 * q, 4), T * 32 * 272 + C * 128 + q * 32))
    A("v_lshrrev_b32 v5, 3, v0")
    A("v_and_b32 v6, 7, v0")
    A("s_lshl_b32 s69, s41, 6")
    A("v_add_u32 v7, s69, v5")
    A("v_mul_u32_u24 v7, 896, v7")
    A("v_lshl_add_u32 v7, v6, 4, v7")
    A("s_lshl_b32 s70, s42, 7")
    A("buffer_load_dwordx4 v[72:75], v7, s[52:55], s70 offen")
    A("v_lshlrev_b32 v76, 5, v6")
    A("s_lshl_b32 s71, s42, 8")
    A("buffer_load_dwordx4 v[80:83], v76, s[56:59], s71 offen")
    A("buffer_load_dwordx4 v[84:87], v76, s[56:59], s71 offen offset:16")
    A("v_mul_u32_u24 v4, 272, v5")
    A("v_lshl_add_u32 v4, v6, 5, v4")
    A("s_waitcnt lgkmcnt(0)")
    stamp()
    A("s_barrier")
    stamp()
    for w in range(8):
        if w * 64 * 272 + 16 < 65536 - 16:
            A("ds_read_b128 %s, v4 offset:%d" % (vr(88 + 8 * w, 4), w * 64 * 272))
            A("ds_read_b128 %s, v4 offset:%d" % (vr(92 + 8 * w, 4), w * 64 * 272 + 16))
        else:
            if w == 4:
                A("v_add_u32 v4, %d, v4" % (4 * 64 * 272))
            A("ds_read_b128 %s, v4 offset:%d" % (vr(88 + 8 * w, 4), (w - 4) * 64 * 272))
            A("ds_read_b128 %s, v4 offset:%d" % (vr(92 + 8 * w, 4), (w - 4) * 64 * 272 + 16))
    A("s_waitcnt lgkmcnt(0)")
    for w in range(1, 8):
        for j in range(8):
            A("v_add_f32 v%d, v%d, v%d" % (88 + j, 88 + j, 88 + 8 * w + j))
    A("s_waitcnt vmcnt(0)")
    for p in range(4):
        A("v_lshlrev_b32 v%d, 16, v%d" % (100 + 2 * p, 72 + p))
        A("v_and_b32 v%d, 0xffff0000, v%d" % (101 + 2 * p, 72 + p))
    for j in range(8):
        A("v_fmac_f32 v%d, v%d, v%d" % (100 + j, 88 + j, 80 + j))
    for p in range(4):
        A("v_cvt_pk_bf16_f32 v%d, v%d, v%d" % (108 + p, 100 + 2 * p, 101 + 2 * p))
    A("buffer_store_dwordx4 v[108:111], v7, s[60:63], s70 offen")
    stamp_flush()
    kernel_end(name)
    kernel_desc(name, max(FB + 16 * NB, 160))
    return (name, 224, 512, 8 * 64 * 272)

def gen_nop():
    name = "nop_kernel"
    kernel_begin(name, 1)
    kernel_end(name)
    kernel_desc(name, 8)
    return (name, 1, 64, 0)

def main():
    launches = []
    nn = int(os.environ.get("NOPS", "0"))
    if nn:
        l = gen_nop()
        launches += [l] * nn
    launches.append(gen_prep())
    launches.append(gen_lngemm("qkv"))
    launches.append(gen_attn())
    launches.append(gen_skgemm("wo"))
    launches.append(gen_lngemm("mlp1"))
    launches.append(gen_skgemm("mlp2"))
    hdr = open("cdna_kernels/%s.s.ref" % NAME).read().split("\n")
    out = []
    for l in hdr:
        if l.startswith("; @launch") or l.startswith("; Override"):
            continue
        if not l.startswith(";"):
            break
        out.append(l)
    only = sys.argv[2] if len(sys.argv) > 2 else None
    for (n, g, b, lds) in launches:
        out.append("; @launch kernel=%s grid=(%d,1,1) block=(%d,1,1) lds=%d" % (n, g, b, lds))
        if os.environ.get("DUP", "") and os.environ["DUP"] in n:
            out.append("; @launch kernel=%s grid=(%d,1,1) block=(%d,1,1) lds=%d" % (n, g, b, lds))
    out.append('.amdgcn_target "amdgcn-amd-amdhsa--gfx950"')
    out.append(".text")
    out += A.lines
    out.append('.section .rodata,"a"')
    for k in KDS:
        out.append(".p2align 6")
        out.append(k)
    open(sys.argv[1], "w").write("\n".join(out) + "\n")

if __name__ == "__main__":
    main()
```

```python
import sys

NAME = "adaLN_cond__softmax_full_mha__dense_activation_silu__prompt"

def al(x, a=65536): return (x + a - 1) // a * a
MOD_OFF = 0;                 MOD_SZ = 2688 * 4
WQKV_OFF = al(MOD_OFF + MOD_SZ); WQKV_SZ = 48 * 28 * 1024
WO_OFF = al(WQKV_OFF + WQKV_SZ); WO_SZ = 14 * 32 * 1024
W1_OFF = al(WO_OFF + WO_SZ);  W1_SZ = 56 * 28 * 1024
W2_OFF = al(W1_OFF + W1_SZ);  W2_SZ = 14 * 112 * 1024
Q_OFF = al(W2_OFF + W2_SZ);   QKV_SZ = 16 * 64 * 2 * 1024
K_OFF = Q_OFF + QKV_SZ
V_OFF = K_OFF + QKV_SZ
O_OFF = V_OFF + QKV_SZ;       O_SZ = 64 * 32 * 1024
X2_OFF = al(O_OFF + O_SZ);    X_SZ = 2048 * 448 * 2
H1_OFF = al(X2_OFF + X_SZ);   H1_SZ = 64 * 112 * 1024
WS_END = H1_OFF + H1_SZ

import os
STF = os.environ.get("STF", "sc1")
class Asm:
    def __init__(self):
        self.lines = []
        self.uid = 0
    def __call__(self, s):
        for l in s.strip().split("\n"):
            l = l.strip()
            if l.endswith("#plain"):
                l = l[:-6].strip()
                if os.environ.get("PLAINF"): l = l + " " + os.environ["PLAINF"]
            elif STF and l.startswith("buffer_store_dwordx4"):
                l = l + " " + STF
            self.lines.append("    " + l)
    def label(self, l):
        self.lines.append(l + ":")
    def new(self, p="L"):
        self.uid += 1
        return "%s_%d" % (p, self.uid)
    def raw(self, s):
        self.lines.append(s)

A = Asm()

def vr(b, n=1):
    return "v%d" % b if n == 1 else "v[%d:%d]" % (b, b + n - 1)
def sr(b, n=1):
    return "s%d" % b if n == 1 else "s[%d:%d]" % (b, b + n - 1)

P_X, P_WQKV, P_WO, P_BX, P_W1, P_W2, P_C, P_WMOD = 16, 18, 20, 22, 24, 26, 28, 30
P_OUT, P_DBG, P_WS = 32, 34, 36

def kernel_begin(name, nwg):
    NST[0] = 0
    KIDX[0] = len(KDS)
    A.raw(".globl %s" % name)
    A.raw(".p2align 8")
    A.raw(".type %s,@function" % name)
    A.label(name)
    A("s_cmp_ge_u32 s2, %d" % nwg)
    A("s_cbranch_scc1 %s_end" % name)
    A("s_load_dwordx16 s[16:31], s[0:1], 0")
    A("s_load_dwordx4 s[32:35], s[0:1], 64")
    A("s_load_dwordx2 s[36:37], s[0:1], 80")
    if STAMP:
        A("s_memrealtime s[96:97]")
        A("v_mov_b32 v255, 0")

def kernel_end(name):
    A.label(name + "_end")
    A("s_endpgm")

KDS = []
def kernel_desc(name, vgpr, sgpr=100):
    if STAMP: vgpr = 256
    vg = (vgpr + 7) // 8 * 8
    KDS.append(""".amdhsa_kernel %s
  .amdhsa_next_free_vgpr %d
  .amdhsa_next_free_sgpr %d
  .amdhsa_accum_offset %d
  .amdhsa_group_segment_fixed_size 0
  .amdhsa_kernarg_size 88
  .amdhsa_user_sgpr_count 2
  .amdhsa_user_sgpr_kernarg_segment_ptr 1
  .amdhsa_system_sgpr_workgroup_id_x 1
.end_amdhsa_kernel""" % (name, vg, sgpr, vg))

def srd(d, p, off, size):
    if off:
        A("s_add_u32 s%d, s%d, 0x%x" % (d, p, off))
        A("s_addc_u32 s%d, s%d, 0" % (d + 1, p + 1))
    else:
        A("s_mov_b32 s%d, s%d" % (d, p))
        A("s_mov_b32 s%d, s%d" % (d + 1, p + 1))
    A("s_mov_b32 s%d, 0x%x" % (d + 2, size))
    A("s_mov_b32 s%d, 0x20000" % (d + 3))

import os
STAMP = 1 if os.environ.get("STAMP", "") not in ("", "0") else 0
STAMP_OFF = 48 << 20
KIDX = [0]
NST = [0]
def stamp():
    if not STAMP: return
    i = NST[0]
    if i >= 13: return
    NST[0] += 1
    A("s_memtime s[92:93]")
    A("s_waitcnt lgkmcnt(0)")
    A("v_writelane_b32 v255, s92, %d" % i)
def stamp_flush(tmpv=250):
    if not STAMP: return
    stamp()
    srd(72, P_WS, STAMP_OFF + KIDX[0] * 256 * 16 * 64, 256 * 16 * 64)
    A("s_memrealtime s[92:93]")
    A("s_waitcnt lgkmcnt(0)")
    A("v_writelane_b32 v255, s96, 14")
    A("v_writelane_b32 v255, s92, 15")
    A("v_lshrrev_b32 v%d, 6, v0" % tmpv)
    A("s_lshl_b32 s94, s2, 4")
    A("v_add_u32 v%d, s94, v%d" % (tmpv, tmpv))
    A("v_lshlrev_b32 v%d, 6, v%d" % (tmpv, tmpv))
    A("v_and_b32 v%d, 63, v0" % (tmpv + 1))
    A("v_lshl_add_u32 v%d, v%d, 2, v%d" % (tmpv, tmpv + 1, tmpv))
    A("s_mov_b64 exec, 0xffff")
    A("buffer_store_dword v255, v%d, s[72:75], 0 offen" % tmpv)
    A("s_waitcnt vmcnt(0)")
    A("s_mov_b64 exec, -1")

def nops(n):
    while n > 0:
        k = min(n, 16)
        A("s_nop %d" % (k - 1))
        n -= k

def gen_prep():
    name = "prep_kernel"
    NW_MOD, NW_QKV, NW_WO, NW_W1, NW_W2 = 21, 48, (56 if (os.environ.get('SIDE', '0') == '0' and os.environ.get('HELP', '0') == '0') else 16), 0, 0
    b1 = NW_MOD; b2 = b1 + NW_QKV; b3 = b2 + NW_WO; b4 = b3 + NW_W1; b5 = b4 + NW_W2
    kernel_begin(name, b5)
    A("v_and_b32 v1, 7, v0")
    A("v_bfe_u32 v2, v0, 3, 1")
    A("v_lshrrev_b32 v3, 4, v0")
    A("s_waitcnt lgkmcnt(0)")
    A("s_cmp_lt_u32 s2, %d" % b1)
    A("s_cbranch_scc1 prep_mod")
    A("s_mov_b32 s60, 0x05040100")
    A("s_mov_b32 s61, 0x07060302")
    A("s_cmp_lt_u32 s2, %d" % b2)
    A("s_cbranch_scc1 prep_qkv")
    A("v_lshrrev_b32 v40, 6, v0")
    A("v_and_b32 v41, 63, v0")
    A("v_readfirstlane_b32 s40, v40")
    A("v_lshlrev_b32 v42, 4, v41")
    A("s_sub_u32 s72, s2, %d" % b2)
    A("s_lshl_b32 s72, s72, 3")
    A("s_add_u32 s72, s72, s40")
    if os.environ.get('SIDE', '0') == '1':
        A("s_add_u32 s72, s72, 896")
    PL = lambda s: "prep_%s" % s
    if os.environ.get('SIDE', '0') == '1':
        A("s_lshl_b32 s92, s40, 12")
        emit_rl_decode(PL, 72, 48, 41)
        emit_rl_body(48, 41, 42, 92, plain=True)
    elif os.environ.get('HELP', '0') == '0':
        A("s_lshl_b32 s92, s40, 13")
        emit_rl2(PL, 72, 48, 41, 42, 92)
    if os.environ.get("CPF", "1") == "1":
        A("s_cmp_ge_u32 s2, %d" % (b2 + 16))
        A("s_cbranch_scc1 prep_nopf")
        A("s_getpc_b64 s[94:95]")
        A.label("prep_pc")
        A("s_add_u32 s94, s94, qkv_kernel-prep_pc")
        A("s_addc_u32 s95, s95, 0")
        A("v_lshlrev_b32 v43, 6, v0")
        A("global_load_dword v44, v43, s[94:95]")
        A("v_add_u32 v43, 0x8000, v43")
        A("v_cmp_gt_u32 vcc, (mlp2_kernel_end-qkv_kernel), v43")
        A("s_and_saveexec_b64 s[96:97], vcc")
        A("s_cbranch_execz prep_nopf")
        A("global_load_dword v45, v43, s[94:95]")
        A.label("prep_nopf")
    if os.environ.get("PF2", "0") == "1":
        A("s_mov_b64 exec, -1")
        A("s_cmp_ge_u32 s2, %d" % (b2 + 16))
        A("s_cbranch_scc1 prep_nopf2")
        srd(40, P_X, 0, X_SZ)
        A("s_sub_u32 s44, s2, %d" % b2)
        A("s_mul_i32 s44, s44, 114688")
        A("v_lshlrev_b32 v43, 4, v0")
        for i in range(14):
            A("buffer_load_dwordx4 v[48:51], v43, s[40:43], s44 offen")
            A("s_add_u32 s44, s44, 8192")
        srd(40, P_WS, 0, WS_END)
        A("v_lshlrev_b32 v43, 16, v0")
        A("buffer_load_dword v52, v43, s[40:43], 0 offen")
        srd(44, P_OUT, 0, X_SZ)
        A("buffer_load_dword v53, v43, s[44:47], 0 offen")
        A.label("prep_nopf2")
    stamp_flush()
    NST[0] = 0
    A("s_endpgm")
    def common(RS, nunits):
        A("s_mov_b32 s50, %d" % RS)
        A("s_mov_b32 s51, %d" % (2 * RS))
        A("s_mov_b32 s52, %d" % (3 * RS))
        if nunits < 512:
            A("v_cmp_gt_u32 vcc, %d, v0" % nunits)
            A("s_and_saveexec_b64 s[54:55], vcc")
            A("s_cbranch_execz %s_end" % name)
        for grp, vo in ((0, 4), (1, 5)):
            for i in range(4):
                so = "0" if i == 0 else "s%d" % (49 + i)
                A("buffer_load_dwordx2 %s, v%d, s[40:43], %s offen" % (vr(8 + 2 * (grp * 4 + i), 2), vo, so))
        A("v_lshlrev_b32 v6, 6, v0")
        A("s_waitcnt vmcnt(0)")
        for i in range(4):
            sel = "s61" if (i & 1) else "s60"
            for p in range(4):
                A("v_perm_b32 v%d, v%d, v%d, %s" % (24 + 4 * i + p, 8 + 2 * (2 * p + 1) + (i >> 1), 8 + 2 * (2 * p) + (i >> 1), sel))
        for i in range(4):
            A("ds_write_b128 v6, %s offset:%d" % (vr(24 + 4 * i, 4), 16 * i))
        A("v_and_b32 v7, 63, v0")
        A("v_lshrrev_b32 v6, 6, v0")
        A("v_lshlrev_b32 v6, 12, v6")
        A("v_lshl_add_u32 v6, v7, 4, v6")
        A("s_waitcnt lgkmcnt(0)")
        for i in range(4):
            A("ds_read_b128 %s, v6 offset:%d" % (vr(24 + 4 * i, 4), 1024 * i))
        for i in range(4):
            A("s_waitcnt lgkmcnt(%d)" % (3 - i))
            A("buffer_store_dwordx4 %s, v6, s[44:47], s48 offen offset:%d" % (vr(24 + 4 * i, 4), 1024 * i))
        n0 = NST[0]
        stamp_flush()
        NST[0] = n0
        A("s_endpgm")

    A.label("prep_qkv")
    RS = 2688
    A("s_sub_u32 s56, s2, %d" % b1)
    A("s_mul_i32 s57, s56, 171")
    A("s_lshr_b32 s57, s57, 9")
    A("s_mul_i32 s58, s57, 3")
    A("s_sub_u32 s58, s56, s58")
    A("s_mul_i32 s58, s58, 896")
    A("s_mul_i32 s57, s57, 56")
    A("s_add_u32 s58, s58, s57")
    srd(40, P_WQKV, 0, 448 * 1344 * 2)
    srd(44, P_WS, WQKV_OFF, WQKV_SZ)
    A("s_mul_i32 s48, s56, %d" % (28 * 1024))
    A("v_lshlrev_b32 v4, 4, v3")
    A("v_lshl_add_u32 v4, v2, 3, v4")
    A("s_mov_b32 s59, %d" % RS)
    A("v_mul_lo_u32 v4, v4, s59")
    A("v_lshl_add_u32 v4, v1, 3, v4")
    A("v_add_u32 v4, s58, v4")
    A("v_add_u32 v5, %d, v4" % (4 * RS))
    A("v_mov_b32 v7, 0x7f000000")
    A("v_cmp_eq_u32 vcc, 7, v1")
    A("s_nop 1")
    A("v_cndmask_b32 v4, v4, v7, vcc")
    A("v_cndmask_b32 v5, v5, v7, vcc")
    common(RS, 448)

    A.label("prep_mod")
    stamp()
    srd(40, P_WMOD, 0, 448 * 2688 * 2)
    srd(44, P_C, 0, 896)
    srd(48, P_WS, MOD_OFF, MOD_SZ)
    A("v_lshrrev_b32 v1, 6, v0")
    A("v_and_b32 v2, 63, v0")
    A("v_readfirstlane_b32 s56, v1")
    A("s_nop 3")
    A("s_mul_i32 s57, s56, 112")
    A("v_lshlrev_b32 v3, 1, v2")
    A("buffer_load_ushort v4, v3, s[44:47], s57 offen")
    A("s_lshl_b32 s58, s2, 8")
    A("v_lshlrev_b32 v5, 2, v2")
    A("v_add_u32 v5, s58, v5")
    A("s_mul_i32 s59, s56, %d" % (56 * 5376))
    for i in range(56):
        A("buffer_load_dword v%d, v5, s[40:43], s59 offen" % (16 + i))
        A("s_add_u32 s59, s59, 5376")
    stamp()
    A("s_waitcnt vmcnt(56)")
    stamp()
    A("v_lshlrev_b32 v4, 16, v4")
    A("v_mul_f32 v6, 0xbfb8aa3b, v4")
    A("v_exp_f32 v6, v6")
    A("s_nop 0")
    A("v_add_f32 v6, 1.0, v6")
    A("v_rcp_f32 v6, v6")
    A("s_nop 0")
    A("v_mul_f32 v6, v4, v6")
    A("v_mov_b32 v8, 0")
    A("v_mov_b32 v9, 0")
    for i in range(56):
        A("v_readlane_b32 s60, v6, %d" % i)
        A("s_waitcnt vmcnt(%d)" % (55 - i))
        A("v_lshlrev_b32 v10, 16, v%d" % (16 + i))
        A("v_and_b32 v11, 0xffff0000, v%d" % (16 + i))
        A("v_fmac_f32 v8, s60, v10")
        A("v_fmac_f32 v9, s60, v11")
    stamp()
    A("v_lshlrev_b32 v12, 3, v0")
    A("ds_write_b64 v12, v[8:9]")
    A("s_waitcnt lgkmcnt(0)")
    A("s_barrier")
    A("s_cmp_lg_u32 s56, 0")
    A("s_cbranch_scc1 %s_end" % name)
    for w in range(8):
        A("ds_read_b64 %s, v12 offset:%d" % (vr(16 + 2 * w, 2), 512 * w))
    A("s_waitcnt lgkmcnt(0)")
    for w in range(1, 8):
        A("v_add_f32 v16, v16, v%d" % (16 + 2 * w))
        A("v_add_f32 v17, v17, v%d" % (17 + 2 * w))
    A("s_lshl_b32 s58, s2, 7")
    A("v_lshlrev_b32 v3, 1, v2")
    A("v_add_u32 v3, s58, v3")
    A("v_subrev_u32 v10, 448, v3")
    A("v_cmp_gt_u32 vcc, 448, v10")
    A("s_nop 1")
    A("s_mov_b64 s[62:63], vcc")
    A("v_subrev_u32 v11, 1792, v3")
    A("v_cmp_gt_u32 vcc, 448, v11")
    A("s_nop 1")
    A("s_or_b64 vcc, vcc, s[62:63]")
    A("v_add_f32 v18, 1.0, v16")
    A("v_add_f32 v19, 1.0, v17")
    A("s_nop 1")
    A("v_cndmask_b32 v16, v16, v18, vcc")
    A("v_cndmask_b32 v17, v17, v19, vcc")
    A("v_lshlrev_b32 v3, 2, v3")
    A("buffer_store_dwordx2 v[16:17], v3, s[48:51], 0 offen")
    stamp_flush()
    kernel_end(name)
    kernel_desc(name, 128)
    return (name, b5, 512, 65536)


def emit_rl2(L, su, RL, lane, lane16, scr, mid=None, plain=True):
    A("s_cmp_lt_u32 s%d, 56" % su)
    A("s_cbranch_scc1 %s" % L("r2_wo"))
    A("s_cmp_lt_u32 s%d, 252" % su)
    A("s_cbranch_scc1 %s" % L("r2_w1"))
    A("s_sub_u32 s74, s%d, 252" % su)
    A("s_mul_i32 s75, s74, 2341")
    A("s_lshr_b32 s75, s75, 16")
    A("s_mul_i32 s76, s75, 28")
    A("s_sub_u32 s76, s74, s76")
    srd(84, P_W2, 0, 1792 * 448 * 2)
    A("s_mov_b32 s77, 896")
    A("s_mov_b32 s78, 32")
    A("s_mov_b32 s79, 4")
    A("s_mov_b32 s80, 112")
    A("s_mov_b32 s81, 0x%x" % W2_OFF)
    A("s_mov_b32 s82, 0")
    A("s_branch %s" % L("r2_go"))
    A.label(L("r2_w1"))
    A("s_sub_u32 s74, s%d, 56" % su)
    A("s_mul_i32 s75, s74, 9363")
    A("s_lshr_b32 s75, s75, 16")
    A("s_mul_i32 s76, s75, 7")
    A("s_sub_u32 s76, s74, s76")
    srd(84, P_W1, 0, 448 * 1792 * 2)
    A("s_mov_b32 s77, 3584")
    A("s_mov_b32 s78, 32")
    A("s_mov_b32 s79, 8")
    A("s_mov_b32 s80, 28")
    A("s_mov_b32 s81, 0x%x" % W1_OFF)
    A("s_mov_b32 s82, 0")
    A("s_branch %s" % L("r2_go"))
    A.label(L("r2_wo"))
    A("s_lshr_b32 s75, s%d, 3" % su)
    A("s_and_b32 s76, s%d, 7" % su)
    srd(84, P_WO, 0, 448 * 448 * 2)
    A("s_mov_b32 s77, 896")
    A("s_mov_b32 s78, 28")
    A("s_mov_b32 s79, 4")
    A("s_mov_b32 s80, 32")
    A("s_mov_b32 s81, 0x%x" % WO_OFF)
    A("s_mov_b32 s82, 1")
    A.label(L("r2_go"))
    srd(88, P_WS, 0, W2_OFF + W2_SZ)
    A("s_lshl_b32 s83, s75, 1")
    A("s_mul_i32 s83, s83, s80")
    A("s_lshl_b32 s74, s76, 2")
    A("s_add_u32 s83, s83, s74")
    A("s_lshl_b32 s83, s83, 10")
    A("s_add_u32 s81, s81, s83")
    A("s_lshl_b32 s80, s80, 10")
    A("s_add_u32 s80, s81, s80")
    A("v_and_b32 v%d, 7, v%d" % (RL, lane))
    A("v_bfe_u32 v%d, v%d, 3, 1" % (RL + 1, lane))
    A("v_lshrrev_b32 v%d, 4, v%d" % (RL + 2, lane))
    A("v_add_u32 v%d, s74, v%d" % (RL + 3, RL + 2))
    A("v_lshrrev_b32 v%d, 1, v%d" % (RL + 4, RL + 3))
    A("v_mul_lo_u32 v%d, v%d, s78" % (RL + 4, RL + 4))
    A("v_and_b32 v%d, 1, v%d" % (RL + 5, RL + 3))
    A("v_lshl_add_u32 v%d, v%d, 4, v%d" % (RL + 4, RL + 5, RL + 4))
    A("v_mul_lo_u32 v%d, v%d, s79" % (RL + 6, RL + 1))
    A("v_add_u32 v%d, v%d, v%d" % (RL + 4, RL + 4, RL + 6))
    A("v_mul_lo_u32 v%d, v%d, s77" % (RL + 4, RL + 4))
    A("v_lshl_add_u32 v%d, v%d, 4, v%d" % (RL + 4, RL, RL + 4))
    A("s_lshl_b32 s83, s75, 7")
    A("v_add_u32 v%d, s83, v%d" % (RL + 4, RL + 4))
    A("s_sub_u32 s83, 12, s79")
    A("s_mul_i32 s83, s83, s77")
    A("v_add_u32 v%d, s83, v%d" % (RL + 6, RL + 4))
    A("v_and_b32 v%d, v%d, v%d" % (RL + 5, RL + 5, RL + 1))
    A("v_and_b32 v%d, s82, v%d" % (RL + 5, RL + 5))
    A("v_mov_b32 v%d, 0x7f000000" % (RL + 7))
    A("v_cmp_eq_u32 vcc, 1, v%d" % (RL + 5))
    A("s_lshl_b32 s78, s77, 1")
    A("s_add_u32 s79, s78, s77")
    A("v_cndmask_b32 v%d, v%d, v%d, vcc" % (RL + 6, RL + 6, RL + 7))
    R0 = RL + 8
    for grp, vo in ((0, RL + 4), (1, RL + 6)):
        for i, so in enumerate(("0", "s77", "s78", "s79")):
            A("buffer_load_dwordx4 %s, v%d, s[84:87], %s offen" % (vr(R0 + 4 * (grp * 4 + i), 4), vo, so))
    if mid: mid()
    A("s_mov_b32 s74, 0x05040100")
    A("s_mov_b32 s75, 0x07060302")
    A("v_lshrrev_b32 v%d, 2, v%d" % (RL + 3, RL))
    A("v_lshlrev_b32 v%d, 12, v%d" % (RL + 3, RL + 3))
    A("v_lshl_add_u32 v%d, v%d, 10, v%d" % (RL + 3, RL + 2, RL + 3))
    A("v_lshl_add_u32 v%d, v%d, 9, v%d" % (RL + 3, RL + 1, RL + 3))
    A("v_and_b32 v%d, 3, v%d" % (RL + 5, RL))
    A("v_lshl_add_u32 v%d, v%d, 7, v%d" % (RL + 3, RL + 5, RL + 3))
    A("v_add_u32 v%d, s%d, v%d" % (RL + 3, scr, RL + 3))
    A("v_add_u32 v%d, s%d, v%d" % (RL + 1, scr, lane16))
    O0 = R0 + 32
    A("s_waitcnt vmcnt(0)")
    for i in range(8):
        sel = "s75" if (i & 1) else "s74"
        for p in range(4):
            A("v_perm_b32 v%d, v%d, v%d, %s" % (O0 + 4 * i + p, R0 + 4 * (2 * p + 1) + (i >> 1), R0 + 4 * (2 * p) + (i >> 1), sel))
    for i in range(8):
        A("ds_write_b128 v%d, %s offset:%d" % (RL + 3, vr(O0 + 4 * i, 4), 16 * i))
    A("s_waitcnt lgkmcnt(0)")
    for q in range(8):
        A("ds_read_b128 %s, v%d offset:%d" % (vr(O0 + 4 * q, 4), RL + 1, 1024 * q))
    for q in range(8):
        A("s_waitcnt lgkmcnt(%d)" % (7 - q))
        A("buffer_store_dwordx4 %s, v%d, s[88:91], %s offen offset:%d%s" % (vr(O0 + 4 * q, 4), lane16, "s81" if q < 4 else "s80", 1024 * (q & 3), " #plain" if plain else ""))


def emit_rl_decode(L, su, RL, lane):
    A("s_min_u32 s74, s%d, 895" % su)
    A("s_cmp_lt_u32 s74, 112")
    A("s_cbranch_scc1 %s" % L("rl_wo"))
    A("s_cmp_lt_u32 s74, 504")
    A("s_cbranch_scc1 %s" % L("rl_w1"))
    A("s_sub_u32 s74, s74, 504")
    A("s_mul_i32 s75, s74, 2341")
    A("s_lshr_b32 s75, s75, 16")
    A("s_mul_i32 s76, s75, 28")
    A("s_sub_u32 s76, s74, s76")
    srd(84, P_W2, 0, 1792 * 448 * 2)
    A("s_mov_b32 s77, 896")
    A("s_mov_b32 s78, 32")
    A("s_mov_b32 s79, 4")
    A("s_mul_i32 s80, s75, 112")
    A("s_mov_b32 s81, 0x%x" % W2_OFF)
    A("s_mov_b32 s82, 0")
    A("s_branch %s" % L("rl_go"))
    A.label(L("rl_w1"))
    A("s_sub_u32 s74, s74, 112")
    A("s_mul_i32 s75, s74, 9363")
    A("s_lshr_b32 s75, s75, 16")
    A("s_mul_i32 s76, s75, 7")
    A("s_sub_u32 s76, s74, s76")
    srd(84, P_W1, 0, 448 * 1792 * 2)
    A("s_mov_b32 s77, 3584")
    A("s_mov_b32 s78, 32")
    A("s_mov_b32 s79, 8")
    A("s_mul_i32 s80, s75, 28")
    A("s_mov_b32 s81, 0x%x" % W1_OFF)
    A("s_mov_b32 s82, 0")
    A("s_branch %s" % L("rl_go"))
    A.label(L("rl_wo"))
    A("s_lshr_b32 s75, s74, 3")
    A("s_and_b32 s76, s74, 7")
    srd(84, P_WO, 0, 448 * 448 * 2)
    A("s_mov_b32 s77, 896")
    A("s_mov_b32 s78, 28")
    A("s_mov_b32 s79, 4")
    A("s_lshl_b32 s80, s75, 5")
    A("s_mov_b32 s81, 0x%x" % WO_OFF)
    A("s_mov_b32 s82, 1")
    A.label(L("rl_go"))
    srd(88, P_WS, 0, W2_OFF + W2_SZ)
    A("s_cmp_ge_u32 s%d, 896" % su)
    A("s_cselect_b32 s86, 0, s86")
    A("s_cselect_b32 s90, 0, s90")
    A("s_lshl_b32 s83, s76, 2")
    A("s_add_u32 s80, s80, s83")
    A("s_lshl_b32 s80, s80, 10")
    A("s_add_u32 s81, s81, s80")
    A("v_and_b32 v%d, 7, v%d" % (RL, lane))
    A("v_bfe_u32 v%d, v%d, 3, 1" % (RL + 1, lane))
    A("v_lshrrev_b32 v%d, 4, v%d" % (RL + 2, lane))
    A("v_add_u32 v%d, s83, v%d" % (RL + 2, RL + 2))
    A("v_lshrrev_b32 v%d, 1, v%d" % (RL + 3, RL + 2))
    A("v_mul_lo_u32 v%d, v%d, s78" % (RL + 3, RL + 3))
    A("v_and_b32 v%d, 1, v%d" % (RL + 4, RL + 2))
    A("v_lshl_add_u32 v%d, v%d, 4, v%d" % (RL + 3, RL + 4, RL + 3))
    A("v_mul_lo_u32 v%d, v%d, s79" % (RL + 5, RL + 1))
    A("v_add_u32 v%d, v%d, v%d" % (RL + 3, RL + 3, RL + 5))
    A("v_mul_lo_u32 v%d, v%d, s77" % (RL + 3, RL + 3))
    A("v_lshl_add_u32 v%d, v%d, 3, v%d" % (RL + 3, RL, RL + 3))
    A("s_lshl_b32 s83, s75, 6")
    A("v_add_u32 v%d, s83, v%d" % (RL + 3, RL + 3))
    A("s_sub_u32 s83, 12, s79")
    A("s_mul_i32 s83, s83, s77")
    A("v_add_u32 v%d, s83, v%d" % (RL + 5, RL + 3))
    A("v_and_b32 v%d, v%d, v%d" % (RL + 4, RL + 4, RL + 1))
    A("v_and_b32 v%d, s82, v%d" % (RL + 4, RL + 4))
    A("v_mov_b32 v%d, 0x7f000000" % (RL + 6))
    A("v_cmp_eq_u32 vcc, 1, v%d" % (RL + 4))
    A("s_lshl_b32 s78, s77, 1")
    A("s_add_u32 s79, s78, s77")
    A("v_cndmask_b32 v%d, v%d, v%d, vcc" % (RL + 5, RL + 5, RL + 6))

def emit_rl_body(RL, lane, lane16, scratch_sreg, plain=False):
    for grp, vo in ((0, RL + 3), (1, RL + 5)):
        for i, so in enumerate(("0", "s77", "s78", "s79")):
            A("buffer_load_dwordx2 %s, v%d, s[84:87], %s offen" % (vr(RL + 8 + 2 * (grp * 4 + i), 2), vo, so))
    A("s_mov_b32 s74, 0x05040100")
    A("s_mov_b32 s75, 0x07060302")
    A("v_lshlrev_b32 v%d, 6, v%d" % (RL, lane))
    A("v_add_u32 v%d, s%d, v%d" % (RL, scratch_sreg, RL))
    A("v_add_u32 v%d, s%d, v%d" % (RL + 1, scratch_sreg, lane16))
    A("s_waitcnt vmcnt(0)")
    for i in range(4):
        sel = "s75" if (i & 1) else "s74"
        for p in range(4):
            A("v_perm_b32 v%d, v%d, v%d, %s" % (RL + 24 + 4 * i + p, RL + 8 + 2 * (2 * p + 1) + (i >> 1), RL + 8 + 2 * (2 * p) + (i >> 1), sel))
    for i in range(4):
        A("ds_write_b128 v%d, %s offset:%d" % (RL, vr(RL + 24 + 4 * i, 4), 16 * i))
    A("s_waitcnt lgkmcnt(0)")
    for i in range(4):
        A("ds_read_b128 %s, v%d offset:%d" % (vr(RL + 24 + 4 * i, 4), RL + 1, 1024 * i))
    for i in range(4):
        A("s_waitcnt lgkmcnt(%d)" % (3 - i))
        A("buffer_store_dwordx4 %s, v%d, s[88:91], s81 offen offset:%d%s" % (vr(RL + 24 + 4 * i, 4), lane16, 1024 * i, " #plain" if plain else ""))

def gen_lngemm(kind):
    name = "qkv_kernel" if kind == "qkv" else "mlp1_kernel"
    NCT = 6 if kind == "qkv" else 7
    MODL = 57344
    kernel_begin(name, 256)
    L = lambda s: "%s_%s" % (name, s)
    A("v_lshrrev_b32 v1, 6, v0")
    A("v_and_b32 v2, 63, v0")
    A("v_readfirstlane_b32 s40, v1")
    A("s_lshr_b32 s43, s2, 3")
    A("s_bfe_u32 s41, s2, 0x20001")
    A("s_lshl_b32 s41, s41, 3")
    A("s_and_b32 s42, s43, 7")
    A("s_add_u32 s41, s41, s42")
    A("s_and_b32 s42, s2, 1")
    A("s_lshl_b32 s42, s42, 2")
    A("s_lshr_b32 s43, s43, 3")
    A("s_add_u32 s42, s42, s43")
    A("v_and_b32 v3, 7, v2")
    A("v_lshrrev_b32 v4, 3, v2")
    A("s_waitcnt lgkmcnt(0)")
    stamp()
    if kind == "qkv":
        srd(44, P_X, 0, X_SZ)
        srd(48, P_WS, MOD_OFF, 3584)
        srd(52, P_WS, WQKV_OFF, WQKV_SZ)
    else:
        srd(44, P_WS, X2_OFF, X_SZ)
        srd(48, P_WS, MOD_OFF + 1344 * 4, 3584)
        srd(52, P_WS, W1_OFF, W1_SZ)
    A("s_lshl_b32 s60, s41, 6")
    A("s_lshl_b32 s61, s40, 3")
    A("s_add_u32 s60, s60, s61")
    A("v_add_u32 v5, s60, v3")
    A("v_mul_u32_u24 v5, 896, v5")
    A("v_lshl_add_u32 v5, v4, 4, v5")
    XR = 8
    for i in range(7):
        A("buffer_load_dwordx4 %s, v5, s[44:47], 0 offen offset:%d" % (vr(XR + 4 * i, 4), 128 * i))
        if os.environ.get("LAT") and i == 0:
            stamp()
            A("s_waitcnt vmcnt(0)")
            stamp()
    if os.environ.get("LAT"):
        stamp()
        A("s_waitcnt vmcnt(0)")
        stamp()
    A("v_lshlrev_b32 v6, 4, v0")
    A("buffer_load_dwordx4 v[36:39], v6, s[48:51], 0 offen")
    WR = 128
    A("v_lshlrev_b32 v7, 4, v2")
    A("s_mul_i32 s62, s42, %d" % NCT)
    A("s_add_u32 s62, s62, s40")
    A("s_mul_i32 s63, s62, %d" % (28 * 1024))
    A("s_lshr_b32 s60, s40, 2")
    A("s_mul_i32 s60, s60, 28672")
    A("s_and_b32 s61, s40, 3")
    A("s_lshl_b32 s61, s61, 7")
    A("s_add_u32 s60, s60, s61")
    A("s_barrier")
    XF = 40
    def ln_phase(withw, mode="A"):
        NPRE = int(os.environ.get("NPRE", "8"))
        PER = int(os.environ.get("PER", "18"))
        if os.environ.get("SPLIT", "0") == "1":
            NPRE, PER = (28, 1000) if mode == "A" else (0, 1000)
        wl = []
        for k in range(28):
            wl.append("buffer_load_dwordx4 %s, v7, s[52:55], s63 offen offset:%d" % (vr(WR + 4 * k, 4), 1024 * (k & 3)))
            if (k & 3) == 3:
                wl[-1] += "\ns_add_u32 s63, s63, 4096"
        if not withw: wl = []
        for k in range(min(NPRE, len(wl))):
            A(wl.pop(0))
        A("s_waitcnt vmcnt(%d)" % (NPRE if withw else 0))
        stamp()
        cnt = [0]
        def V(t):
            A(t)
            cnt[0] += 1
            if wl and cnt[0] % PER == 0:
                A(wl.pop(0))
        V("v_add_u32 v6, %d, v6" % MODL)
        V("ds_write_b128 v6, v[36:39]")
        for r in range(28):
            V("v_lshlrev_b32 v%d, 16, v%d" % (XF + 2 * r, XR + r))
            V("v_and_b32 v%d, 0xffff0000, v%d" % (XF + 2 * r + 1, XR + r))
        pr = lambda r: vr(r, 2)
        V("v_pk_add_f32 v[96:97], %s, %s" % (pr(XF), pr(XF + 2)))
        V("v_pk_add_f32 v[98:99], %s, %s" % (pr(XF + 4), pr(XF + 6)))
        for e in range(4, 28):
            a = 96 + 2 * (e & 1)
            V("v_pk_add_f32 %s, %s, %s" % (pr(a), pr(a), pr(XF + 2 * e)))
        V("v_pk_add_f32 v[96:97], v[96:97], v[98:99]")
        V("v_add_f32 v96, v96, v97")
        def xreduce(r, t1, t2):
            V("s_nop 1")
            V("v_add_f32_dpp v%d, v%d, v%d row_ror:8 row_mask:0xf bank_mask:0xf" % (t1, r, r))
            V("v_mov_b32 v%d, v%d" % (t2, t1))
            V("s_nop 1")
            V("v_permlane16_swap_b32 v%d, v%d" % (t1, t2))
            V("s_nop 1")
            V("v_add_f32 v%d, v%d, v%d" % (t1, t1, t2))
            V("v_mov_b32 v%d, v%d" % (t2, t1))
            V("s_nop 1")
            V("v_permlane32_swap_b32 v%d, v%d" % (t1, t2))
            V("s_nop 1")
            V("v_add_f32 v%d, v%d, v%d" % (r, t1, t2))
        xreduce(96, 100, 101)
        V("v_mul_f32 v96, 0x%08x, v96" % f2u(-1.0 / 448))
        V("v_mov_b32 v97, v96")
        for e in range(28):
            V("v_pk_add_f32 %s, %s, v[96:97]" % (pr(XF + 2 * e), pr(XF + 2 * e)))
        V("v_pk_mul_f32 v[98:99], %s, %s" % (pr(XF), pr(XF)))
        V("v_pk_mul_f32 v[100:101], %s, %s" % (pr(XF + 2), pr(XF + 2)))
        for e in range(2, 28):
            a = 98 + 2 * (e & 1)
            V("v_pk_fma_f32 %s, %s, %s, %s" % (pr(a), pr(XF + 2 * e), pr(XF + 2 * e), pr(a)))
        V("v_pk_add_f32 v[98:99], v[98:99], v[100:101]")
        V("v_add_f32 v97, v98, v99")
        xreduce(97, 100, 101)
        V("v_mov_b32 v98, 0x%08x" % f2u(1e-5))
        V("v_fmac_f32 v98, 0x%08x, v97" % f2u(1.0 / 448))
        V("v_rsq_f32 v98, v98")
        V("v_lshlrev_b32 v5, 5, v4")
        V("v_add_u32 v5, %d, v5" % MODL)
        V("v_lshrrev_b32 v6, 1, v4")
        V("v_lshlrev_b32 v6, 10, v6")
        V("v_and_b32 v36, 1, v4")
        V("v_lshl_add_u32 v6, v36, 9, v6")
        V("v_lshl_add_u32 v6, v3, 4, v6")
        V("v_add_u32 v6, s60, v6")
        V("v_mov_b32 v99, v98")
        if os.environ.get("SPLIT", "0") == "1" and mode == "B":
            while wl: A(wl.pop(0))
        A("s_waitcnt lgkmcnt(0)")
        stamp()
        A("s_barrier")
        stamp()
        def rdmod(i):
            b = 8 + 16 * (i & 1)
            V("ds_read_b128 %s, v5 offset:%d" % (vr(b, 4), 256 * i))
            V("ds_read_b128 %s, v5 offset:%d" % (vr(b + 4, 4), 256 * i + 16))
            V("ds_read_b128 %s, v5 offset:%d" % (vr(b + 8, 4), 1792 + 256 * i))
            V("ds_read_b128 %s, v5 offset:%d" % (vr(b + 12, 4), 1792 + 256 * i + 16))
        rdmod(0)
        for i in range(7):
            b = 8 + 16 * (i & 1)
            for j in range(4):
                V("v_pk_mul_f32 %s, %s, v[98:99]" % (pr(XF + 8 * i + 2 * j), pr(XF + 8 * i + 2 * j)))
            if i + 1 < 7:
                A("s_waitcnt lgkmcnt(1)" if i > 0 else "s_waitcnt lgkmcnt(0)")
                rdmod(i + 1)
            else:
                A("s_waitcnt lgkmcnt(0)")
            for j in range(4):
                V("v_pk_fma_f32 %s, %s, %s, %s" % (pr(XF + 8 * i + 2 * j), pr(XF + 8 * i + 2 * j), pr(b + 8 + 2 * j), pr(b + 2 * j)))
            hb = 100 + 4 * (i & 1)
            for p in range(4):
                V("v_cvt_pk_bf16_f32 v%d, v%d, v%d" % (hb + p, XF + 8 * i + 2 * p, XF + 8 * i + 2 * p + 1))
            V("ds_write_b128 v6, %s offset:%d" % (vr(hb, 4), 4096 * i))
        while wl: A(wl.pop(0))
        A("s_waitcnt lgkmcnt(0)")
        stamp()
        A("s_barrier")
        stamp()
    A("s_cmp_ge_u32 s40, %d" % NCT)
    A("s_cbranch_scc1 %s" % L("now"))
    n0 = NST[0]
    if os.environ.get("SPLIT", "0") == "1":
        A("s_cmp_ge_u32 s40, %d" % int(os.environ.get("SPLITW", "3")))
        A("s_cbranch_scc1 %s" % L("modeB"))
        ln_phase(True, "A")
        A("s_branch %s" % L("gemm"))
        A.label(L("modeB"))
        NST[0] = n0
        ln_phase(True, "B")
    else:
        ln_phase(True)
    A("s_branch %s" % L("gemm"))
    A.label(L("now"))
    n1 = NST[0]; NST[0] = n0
    ln_phase(False)
    if kind == "qkv" and os.environ.get("SIDE", "0") == "1":
        A("s_lshl_b32 s72, s2, 1")
        A("s_add_u32 s72, s72, s40")
        A("s_sub_u32 s72, s72, 6")
        A("s_lshl_b32 s92, s40, 12")
        A("s_add_u32 s92, s92, %d" % (57344 + 8192 - 6 * 4096))
        A.label(L("side"))
        emit_rl_decode(L, 72, 192, 2)
        emit_rl_body(192, 2, 7, 92, plain=(os.environ.get("SIDE_PLAIN", "0") == "1"))
        A("s_add_u32 s72, s72, 512")
        A("s_cmp_lt_u32 s72, 896")
        A("s_cbranch_scc1 %s" % L("side"))
    A("s_endpgm")
    A.label(L("gemm"))
    ACC = 8
    HB = 40
    def gemm(transposed):
        NPF = 3
        def rd(s):
            b = HB + 8 * (s % 4)
            A("ds_read_b128 %s, v7 offset:%d" % (vr(b, 4), s * 1024))
            A("ds_read_b128 %s, v7 offset:%d" % (vr(b + 4, 4), 28672 + s * 1024))
        for s in range(NPF):
            rd(s)
        for s in range(28):
            if s + NPF < 28:
                rd(s + NPF)
                A("s_waitcnt lgkmcnt(%d)" % (2 * NPF))
            else:
                A("s_waitcnt lgkmcnt(%d)" % (2 * (27 - s)))
            b = HB + 8 * (s % 4)
            A("s_waitcnt vmcnt(%d)" % (27 - s))
            for T in range(2):
                c = "0" if s == 0 else vr(ACC + 16 * T, 16)
                w = vr(WR + 4 * s, 4); h = vr(b + 4 * T, 4)
                if transposed:
                    A("v_mfma_f32_32x32x16_bf16 %s, %s, %s, %s" % (vr(ACC + 16 * T, 16), w, h, c))
                else:
                    A("v_mfma_f32_32x32x16_bf16 %s, %s, %s, %s" % (vr(ACC + 16 * T, 16), h, w, c))
        nops(16)
    def pack_store(T, srdreg, soff):
        for p in range(8):
            A("v_cvt_pk_bf16_f32 v%d, v%d, v%d" % (72 + p, ACC + 16 * T + 2 * p, ACC + 16 * T + 2 * p + 1))
        A("buffer_store_dwordx4 v[72:75], v7, s[%d:%d], %s offen" % (srdreg, srdreg + 3, soff))
        A("buffer_store_dwordx4 v[76:79], v7, s[%d:%d], %s offen offset:1024" % (srdreg, srdreg + 3, soff))
        A("s_nop 1")
    if kind == "qkv":
        srd(56, P_WS, Q_OFF, 3 * QKV_SZ)
        A("s_lshl_b32 s64, s42, 1")
        A("s_cmp_ge_u32 s40, 3")
        A("s_cselect_b32 s65, 1, 0")
        A("s_add_u32 s64, s64, s65")
        A("s_mul_i32 s65, s65, 3")
        A("s_sub_u32 s65, s40, s65")
        A("s_mul_i32 s66, s65, 0x%x" % QKV_SZ)
        A("s_lshl_b32 s67, s64, 17")
        A("s_add_u32 s66, s66, s67")
        A("s_lshl_b32 s67, s41, 12")
        A("s_add_u32 s66, s66, s67")
        A("s_add_u32 s67, s66, 2048")
        A("s_cmp_eq_u32 s65, 2")
        A("s_cbranch_scc1 %s" % L("v"))
        gemm(True)
        stamp()
        A("s_cmp_eq_u32 s65, 1")
        A("s_cbranch_scc1 %s" % L("kst"))
        import math
        A("s_mov_b32 s68, 0x%08x" % f2u(math.log2(math.e) / math.sqrt(28.0)))
        for r in range(32):
            A("v_mul_f32 v%d, s68, v%d" % (ACC + r, ACC + r))
        A.label(L("kst"))
        pack_store(0, 56, "s66")
        pack_store(1, 56, "s67")
        n0 = NST[0]
        stamp_flush()
        A("s_endpgm")
        NST[0] = n0
        A.label(L("v"))
        gemm(False)
        stamp()
        A("v_and_b32 v80, 31, v2")
        A("v_cmp_eq_u32 vcc, 28, v80")
        A("v_mov_b32 v81, 1.0")
        A("s_nop 1")
        for r in range(32):
            A("v_cndmask_b32 v%d, v%d, v81, vcc" % (ACC + r, ACC + r))
        pack_store(0, 56, "s66")
        pack_store(1, 56, "s67")
    else:
        srd(56, P_WS, H1_OFF, H1_SZ)
        gemm(True)
        stamp()
        for r in range(32):
            A("v_mul_f32 v%d, 0xbfb8aa3b, v%d" % (80 + r, ACC + r))
        for r in range(32):
            A("v_exp_f32 v%d, v%d" % (80 + r, 80 + r))
        for r in range(32):
            A("v_add_f32 v%d, 1.0, v%d" % (80 + r, 80 + r))
        for r in range(32):
            A("v_rcp_f32 v%d, v%d" % (80 + r, 80 + r))
        for r in range(32):
            A("v_mul_f32 v%d, v%d, v%d" % (ACC + r, ACC + r, 80 + r))
        A("s_lshl_b32 s66, s41, 1")
        A("s_mul_i32 s66, s66, %d" % (112 * 1024))
        A("s_lshl_b32 s67, s62, 11")
        A("s_add_u32 s66, s66, s67")
        A("s_add_u32 s67, s66, %d" % (112 * 1024))
        pack_store(0, 56, "s66")
        pack_store(1, 56, "s67")
    stamp_flush()
    kernel_end(name)
    kernel_desc(name, 240)
    return (name, 256, 512, 57344 + 8192 + 8192)

import struct
def f2u(f):
    return struct.unpack("<I", struct.pack("<f", f))[0]

def gen_attn():
    name = "attn_kernel"
    kernel_begin(name, 256)
    L = lambda s: "%s_%s" % (name, s)
    FLAG = 131072
    A("v_lshrrev_b32 v1, 6, v0")
    A("v_and_b32 v2, 63, v0")
    A("v_readfirstlane_b32 s40, v1")
    A("s_and_b32 s41, s2, 15")
    A("s_lshr_b32 s42, s2, 4")
    A("v_lshlrev_b32 v3, 4, v2")
    HELP = os.environ.get("HELP", "0") == "1"
    if HELP:
        A("s_nop 1")
        A("s_cmp_eq_u32 s40, 4")
        A("s_cbranch_scc1 %s" % L("helper"))
    A("v_mov_b32 v4, %d" % FLAG)
    A("v_mov_b32 v5, 0")
    A("ds_write_b32 v4, v5")
    A("s_waitcnt lgkmcnt(0)")
    srd(44, P_WS, Q_OFF, QKV_SZ)
    srd(48, P_WS, K_OFF, QKV_SZ)
    srd(52, P_WS, V_OFF, QKV_SZ)
    srd(56, P_WS, O_OFF, O_SZ)
    A("s_lshl_b32 s60, s42, 2")
    A("s_add_u32 s60, s60, s40")
    A("s_lshl_b32 s61, s41, 6")
    A("s_add_u32 s61, s61, s60")
    A("s_lshl_b32 s61, s61, 11")
    QF = 8
    A("buffer_load_dwordx4 %s, v3, s[44:47], s61 offen" % vr(QF, 4))
    A("buffer_load_dwordx4 %s, v3, s[44:47], s61 offen offset:1024" % vr(QF + 4, 4))
    A("s_lshl_b32 s63, s40, 11")
    def dma_init():
        A("s_lshl_b32 s62, s41, 17")
        A("s_add_u32 s62, s62, s63")
        A("s_mov_b32 s64, 0")
    def dma():
        A("s_add_u32 s65, s64, s63")
        A("s_mov_b32 m0, s65")
        A("s_add_u32 s65, s65, 8192")
        A("buffer_load_dwordx4 v3, s[48:51], s62 offen lds")
        A("buffer_load_dwordx4 v3, s[48:51], s62 offen offset:1024 lds")
        A("s_mov_b32 m0, s65")
        A("s_add_u32 s64, s64, 16384")
        A("buffer_load_dwordx4 v3, s[52:55], s62 offen lds")
        A("buffer_load_dwordx4 v3, s[52:55], s62 offen offset:1024 lds")
        A("s_add_u32 s62, s62, 8192")
        A("s_and_b32 s64, s64, 0xffff")
    O = 16
    S = [32, 48]; P = [64, 72]; KF = [80, 88]; VF = [96, 104]; NM = 112
    VC, VN = 4, 5
    def mfma(d, a, b, c):
        A("v_mfma_f32_32x32x16_bf16 %s, %s, %s, %s" % (vr(d, 16), vr(a, 4), vr(b, 4), c if isinstance(c, str) else vr(c, 16)))
    CH = int(os.environ.get("ATT_CH", "8"))
    NCH = 64 // CH
    CB = CH * 2048
    NSL = 4
    SLB = 2 * CB
    PW = CB // 4 // 1024
    vmq = ["q", "q"]
    def VM(l, tag):
        A(l); vmq.append(tag)
    def vmwait(tag, extra=""):
        idx = max(i for i, t in enumerate(vmq) if t == tag)
        A("s_waitcnt vmcnt(%d) %s" % (len(vmq) - 1 - idx, extra))
    A("s_mul_i32 s69, s40, %d" % (CB // 4))
    A("s_lshl_b32 s70, s41, 17")
    A("s_add_u32 s70, s70, s69")
    def fdma(c):
        out = []
        slot = (c % NSL) * SLB
        for op, sr_ in ((0, 48), (1, 52)):
            for p in range(PW):
                if p % 4 == 0:
                    out.append(("s_add_u32 s71, s69, %d" % (slot + op * CB + p * 1024), None))
                    out.append(("s_mov_b32 m0, s71", None))
                    out.append(("s_add_u32 s72, s70, %d" % (c * CB + p * 1024), None))
                out.append(("buffer_load_dwordx4 v3, s[%d:%d], s72 offen offset:%d lds" % (sr_, sr_ + 3, 1024 * (p % 4)), "c%d" % c))
        return out
    pend = []
    def drip(n):
        k = 0
        while pend and k < n:
            l, tag = pend.pop(0)
            if tag: VM(l, tag); k += 1
            else: A(l)
    pend += fdma(0); drip(1000)
    pend += fdma(1) + fdma(2)
    for r in range(16):
        A("v_mov_b32 v%d, 0" % (O + r))
    for r in range(8):
        A("v_mov_b32 v%d, 0" % (P[1] + r))
        A("v_mov_b32 v%d, 0" % (VF[1] + r))
    A("v_add_u32 v4, 0x10000, v3")
    def lds(dst, addr):
        if addr >= 65536:
            A("ds_read_b128 %s, v4 offset:%d" % (vr(dst, 4), addr - 65536))
        else:
            A("ds_read_b128 %s, v3 offset:%d" % (vr(dst, 4), addr))
    def kaddr(i): return ((i // CH) % NSL) * SLB + (i % CH) * 2048
    def vaddr(i): return ((i // CH) % NSL) * SLB + CB + (i % CH) * 2048
    stamp()
    vmwait("c0")
    A("s_barrier")
    stamp()
    drip(2 * PW)
    lds(KF[0], kaddr(0)); lds(KF[0] + 4, kaddr(0) + 1024)
    lds(KF[1], kaddr(1)); lds(KF[1] + 4, kaddr(1) + 1024)
    A("s_waitcnt lgkmcnt(2)")
    mfma(S[0], KF[0], QF, "0")
    mfma(S[0], KF[0] + 4, QF + 4, S[0])
    nops(16)
    s0 = S[0]
    A("v_max3_f32 v6, v%d, v%d, v%d" % (s0, s0 + 1, s0 + 2))
    for r in range(3, 15, 2):
        A("v_max3_f32 v6, v6, v%d, v%d" % (s0 + r, s0 + r + 1))
    A("v_max_f32 v6, v6, v%d" % (s0 + 15))
    A("v_mov_b32 v7, v6")
    A("s_nop 1")
    A("v_permlane32_swap_b32 v6, v7")
    A("s_nop 1")
    A("v_max_f32 v6, v6, v7")
    for r in range(16):
        A("v_sub_f32 v%d, 0, v6" % (NM + r))
    for r in range(16):
        A("v_sub_f32 v%d, v%d, v6" % (s0 + r, s0 + r))
    stamp()
    for i in range(64):
        c, t = i // CH, i % CH
        b = i & 1
        sc, sn = S[b], S[b ^ 1]
        pc, pp = P[b], P[b ^ 1]
        kn = KF[b ^ 1]; kl = KF[b]; vl = VF[b]; vp = VF[b ^ 1]
        if t == CH - 2 and c + 1 < NCH:
            assert not pend
            vmwait("c%d" % (c + 1), "lgkmcnt(0)")
            A("s_barrier")
            if c + 3 < NCH:
                pend += fdma(c + 3)
        else:
            A("s_waitcnt lgkmcnt(0)")
        def expcvt(q):
            for r in range(4 * q, 4 * q + 4):
                A("v_exp_f32 v%d, v%d" % (sc + r, sc + r))
            A("v_cvt_pk_bf16_f32 v%d, v%d, v%d" % (pc + 2 * q, sc + 4 * q, sc + 4 * q + 1))
            A("v_cvt_pk_bf16_f32 v%d, v%d, v%d" % (pc + 2 * q + 1, sc + 4 * q + 2, sc + 4 * q + 3))
        if i + 1 < 64: mfma(sn, kn, QF, NM)
        if i + 2 < 64:
            lds(kl, kaddr(i + 2)); lds(kl + 4, kaddr(i + 2) + 1024)
        expcvt(0)
        if i > 0: mfma(O, vp, pp, O)
        lds(vl, vaddr(i)); lds(vl + 4, vaddr(i) + 1024)
        drip(1)
        expcvt(1)
        if i + 1 < 64: mfma(sn, kn + 4, QF + 4, sn)
        drip(1)
        expcvt(2)
        if i > 0: mfma(O, vp + 4, pp + 4, O)
        expcvt(3)
    assert not pend
    stamp()
    A("s_waitcnt lgkmcnt(0)")
    mfma(O, VF[1], P[1], O)
    mfma(O, VF[1] + 4, P[1] + 4, O)
    nops(16)
    A("v_mov_b32 v6, v%d" % (O + 12))
    A("v_mov_b32 v7, v%d" % (O + 12))
    A("s_nop 1")
    A("v_permlane32_swap_b32 v6, v7")
    A("v_and_b32 v6, 0x7fffffff, v%d" % O)
    for r in range(1, 16):
        A("v_add_f32 v6, v6, abs(v%d)" % (O + r))
    A("v_add_f32 v6, v6, v7")
    A("v_mov_b32 v1, 0x7b800000")
    A("v_cmp_nlt_f32 vcc, v6, v1")
    A("s_nop 3")
    A("s_cmp_eq_u64 vcc, 0")
    A("s_cbranch_scc1 %s" % L("ok"))
    A("v_mov_b32 v4, %d" % FLAG)
    A("v_mov_b32 v5, 1")
    A("ds_write_b32 v4, v5")
    A.label(L("ok"))
    A("v_mov_b32 v4, %d" % FLAG)
    A("s_waitcnt lgkmcnt(0)")
    A("s_barrier")
    A("ds_read_b32 v5, v4")
    A("s_waitcnt lgkmcnt(0)")
    A("v_readfirstlane_b32 s68, v5")
    A("s_nop 3")
    A("s_cmp_eq_u32 s68, 0")
    A("s_cbranch_scc1 %s" % L("epi"))
    stamp()
    A("s_barrier")
    dma_init()
    dma(); dma(); dma()
    S0 = 32; KF0 = 48; VF0 = 56; P0 = 64
    for r in range(16):
        A("v_mov_b32 v%d, 0" % (O + r))
    A("v_mov_b32 v72, 0xff800000")
    A("s_mov_b32 s66, 0")
    A("s_mov_b32 s67, 0")
    A.label(L("loop"))
    A("s_cmp_ge_u32 s66, 13")
    A("s_cbranch_scc1 %s" % L("w0"))
    A("s_waitcnt vmcnt(8)")
    A("s_barrier")
    dma()
    A("s_branch %s" % L("go"))
    A.label(L("w0"))
    A("s_waitcnt vmcnt(0)")
    A("s_barrier")
    A.label(L("go"))
    A("v_add_u32 v4, s67, v3")
    for t in range(4):
        A("ds_read_b128 %s, v4 offset:%d" % (vr(KF0, 4), 2048 * t))
        A("ds_read_b128 %s, v4 offset:%d" % (vr(KF0 + 4, 4), 2048 * t + 1024))
        A("ds_read_b128 %s, v4 offset:%d" % (vr(VF0, 4), 8192 + 2048 * t))
        A("ds_read_b128 %s, v4 offset:%d" % (vr(VF0 + 4, 4), 8192 + 2048 * t + 1024))
        A("s_waitcnt lgkmcnt(2)")
        mfma(S0, KF0, QF, "0")
        mfma(S0, KF0 + 4, QF + 4, S0)
        nops(16)
        A("v_max3_f32 v73, v%d, v%d, v%d" % (S0, S0 + 1, S0 + 2))
        for r in range(3, 15, 2):
            A("v_max3_f32 v73, v73, v%d, v%d" % (S0 + r, S0 + r + 1))
        A("v_max_f32 v73, v73, v%d" % (S0 + 15))
        A("v_mov_b32 v74, v73")
        A("s_nop 1")
        A("v_permlane32_swap_b32 v73, v74")
        A("s_nop 1")
        A("v_max3_f32 v73, v73, v74, v72")
        A("v_sub_f32 v74, v72, v73")
        A("v_exp_f32 v74, v74")
        A("v_mov_b32 v72, v73")
        for r in range(16):
            A("v_sub_f32 v%d, v%d, v73" % (S0 + r, S0 + r))
        for r in range(16):
            A("v_exp_f32 v%d, v%d" % (S0 + r, S0 + r))
        for r in range(16):
            A("v_mul_f32 v%d, v%d, v74" % (O + r, O + r))
        for p in range(8):
            A("v_cvt_pk_bf16_f32 v%d, v%d, v%d" % (P0 + p, S0 + 2 * p, S0 + 2 * p + 1))
        A("s_waitcnt lgkmcnt(0)")
        A("s_nop 1")
        mfma(O, VF0, P0, O)
        mfma(O, VF0 + 4, P0 + 4, O)
        nops(16)
    A("s_add_u32 s67, s67, 16384")
    A("s_and_b32 s67, s67, 0xffff")
    A("s_add_u32 s66, s66, 1")
    A("s_cmp_lt_u32 s66, 16")
    A("s_cbranch_scc1 %s" % L("loop"))
    A("v_mov_b32 v6, v%d" % (O + 12))
    A("v_mov_b32 v7, v%d" % (O + 12))
    A("s_nop 1")
    A("v_permlane32_swap_b32 v6, v7")
    A.label(L("epi"))
    A("s_nop 1")
    A("v_rcp_f32 v7, v7")
    A("s_nop 0")
    for r in range(16):
        A("v_mul_f32 v%d, v%d, v7" % (O + r, O + r))
    for p in range(8):
        A("v_cvt_pk_bf16_f32 v%d, v%d, v%d" % (64 + p, O + 2 * p, O + 2 * p + 1))
    A("s_lshl_b32 s60, s60, 5")
    A("s_lshl_b32 s61, s41, 1")
    A("s_add_u32 s60, s60, s61")
    A("s_lshl_b32 s60, s60, 10")
    A("buffer_store_dwordx4 %s, v3, s[56:59], s60 offen" % vr(64, 4))
    A("buffer_store_dwordx4 %s, v3, s[56:59], s60 offen offset:1024" % vr(68, 4))
    stamp_flush()
    if HELP:
        A("s_endpgm")
        A.label(L("helper"))
        A("s_waitcnt lgkmcnt(0)")
        A("s_mov_b32 s72, s2")
        A("s_mov_b32 s92, %d" % (131072 + 64))
        H1 = lambda s: "attn_h1_%s" % s
        H2 = lambda s: "attn_h2_%s" % s
        def mid1():
            for _ in range(int(os.environ.get("HB", "3"))): A("s_barrier")
        emit_rl2(H1, 72, 16, 2, 3, 92, mid=mid1, plain=False)
        A("s_add_u32 s72, s2, 256")
        A("s_cmp_ge_u32 s72, 448")
        A("s_cbranch_scc1 %s_end" % name)
        def mid2():
            for _ in range(int(os.environ.get("HB", "3"))): A("s_barrier")
        emit_rl2(H2, 72, 16, 2, 3, 92, mid=mid2, plain=False)
    kernel_end(name)
    kernel_desc(name, 128)
    return (name, 256, 320 if HELP else 256, 131072 + 64 + (8192 if HELP else 0))

def gen_skgemm(kind):
    name = "wo_kernel" if kind == "wo" else "mlp2_kernel"
    KS = 32 if kind == "wo" else 112
    KW = KS // 8
    kernel_begin(name, 224)
    A("v_lshrrev_b32 v1, 6, v0")
    A("v_and_b32 v2, 63, v0")
    A("v_readfirstlane_b32 s40, v1")
    A("s_and_b32 s41, s2, 31")
    A("s_lshr_b32 s42, s2, 5")
    A("v_lshlrev_b32 v3, 4, v2")
    A("s_waitcnt lgkmcnt(0)")
    if kind == "wo":
        srd(44, P_WS, O_OFF, O_SZ)
        srd(48, P_WS, WO_OFF, WO_SZ)
        srd(52, P_X, 0, X_SZ)
        srd(56, P_WS, MOD_OFF + 896 * 4, 1792)
        srd(60, P_WS, X2_OFF, X_SZ)
    else:
        srd(44, P_WS, H1_OFF, H1_SZ)
        srd(48, P_WS, W2_OFF, W2_SZ)
        srd(52, P_WS, X2_OFF, X_SZ)
        srd(56, P_WS, MOD_OFF + 2240 * 4, 1792)
        srd(60, P_OUT, 0, X_SZ)
    A("s_mul_i32 s64, s40, %d" % (KW * 1024))
    A("s_mul_i32 s65, s41, %d" % (2 * KS * 1024))
    A("s_add_u32 s65, s65, s64")
    A("s_add_u32 s66, s65, %d" % (KS * 1024))
    A("s_mul_i32 s67, s42, %d" % (2 * KS * 1024))
    A("s_add_u32 s67, s67, s64")
    A("s_add_u32 s68, s67, %d" % (KS * 1024))
    NB = min(KW, int(os.environ.get('NB', '8')))
    FB = 80
    ACC = 8
    def ld(s):
        b = FB + 16 * (s % NB)
        A("buffer_load_dwordx4 %s, v3, s[44:47], s65 offen offset:%d" % (vr(b, 4), 1024 * (s & 3)))
        A("buffer_load_dwordx4 %s, v3, s[44:47], s66 offen offset:%d" % (vr(b + 4, 4), 1024 * (s & 3)))
        A("buffer_load_dwordx4 %s, v3, s[48:51], s67 offen offset:%d" % (vr(b + 8, 4), 1024 * (s & 3)))
        A("buffer_load_dwordx4 %s, v3, s[48:51], s68 offen offset:%d" % (vr(b + 12, 4), 1024 * (s & 3)))
        if (s & 3) == 3:
            for r in (65, 66, 67, 68):
                A("s_add_u32 s%d, s%d, 4096" % (r, r))
    stamp()
    for s in range(NB):
        ld(s)
    stamp()
    issued = NB
    for s in range(KW):
        A("s_waitcnt vmcnt(%d)" % (4 * (issued - s - 1)))
        b = FB + 16 * (s % NB)
        for T in range(2):
            for C in range(2):
                acc = vr(ACC + 16 * (2 * T + C), 16)
                c = "0" if s == 0 else acc
                A("v_mfma_f32_32x32x16_bf16 %s, %s, %s, %s" % (acc, vr(b + 8 + 4 * C, 4), vr(b + 4 * T, 4), c))
        if issued < KW:
            ld(issued)
            issued += 1
    stamp()
    nops(16)
    A("v_and_b32 v4, 31, v2")
    A("v_mul_u32_u24 v4, 272, v4")
    A("v_lshrrev_b32 v5, 5, v2")
    A("v_lshl_add_u32 v4, v5, 4, v4")
    A("s_mul_i32 s69, s40, %d" % (64 * 272))
    A("v_add_u32 v4, s69, v4")
    for T in range(2):
        for C in range(2):
            for q in range(4):
                A("ds_write_b128 v4, %s offset:%d" % (vr(ACC + 16 * (2 * T + C) + 4 * q, 4), T * 32 * 272 + C * 128 + q * 32))
    A("v_lshrrev_b32 v5, 3, v0")
    A("v_and_b32 v6, 7, v0")
    A("s_lshl_b32 s69, s41, 6")
    A("v_add_u32 v7, s69, v5")
    A("v_mul_u32_u24 v7, 896, v7")
    A("v_lshl_add_u32 v7, v6, 4, v7")
    A("s_lshl_b32 s70, s42, 7")
    A("buffer_load_dwordx4 v[72:75], v7, s[52:55], s70 offen")
    A("v_lshlrev_b32 v76, 5, v6")
    A("s_lshl_b32 s71, s42, 8")
    A("buffer_load_dwordx4 v[80:83], v76, s[56:59], s71 offen")
    A("buffer_load_dwordx4 v[84:87], v76, s[56:59], s71 offen offset:16")
    A("v_mul_u32_u24 v4, 272, v5")
    A("v_lshl_add_u32 v4, v6, 5, v4")
    A("s_waitcnt lgkmcnt(0)")
    stamp()
    A("s_barrier")
    stamp()
    for w in range(8):
        if w * 64 * 272 + 16 < 65536 - 16:
            A("ds_read_b128 %s, v4 offset:%d" % (vr(88 + 8 * w, 4), w * 64 * 272))
            A("ds_read_b128 %s, v4 offset:%d" % (vr(92 + 8 * w, 4), w * 64 * 272 + 16))
        else:
            if w == 4:
                A("v_add_u32 v4, %d, v4" % (4 * 64 * 272))
            A("ds_read_b128 %s, v4 offset:%d" % (vr(88 + 8 * w, 4), (w - 4) * 64 * 272))
            A("ds_read_b128 %s, v4 offset:%d" % (vr(92 + 8 * w, 4), (w - 4) * 64 * 272 + 16))
    A("s_waitcnt lgkmcnt(0)")
    for w in range(1, 8):
        for j in range(8):
            A("v_add_f32 v%d, v%d, v%d" % (88 + j, 88 + j, 88 + 8 * w + j))
    A("s_waitcnt vmcnt(0)")
    for p in range(4):
        A("v_lshlrev_b32 v%d, 16, v%d" % (100 + 2 * p, 72 + p))
        A("v_and_b32 v%d, 0xffff0000, v%d" % (101 + 2 * p, 72 + p))
    for j in range(8):
        A("v_fmac_f32 v%d, v%d, v%d" % (100 + j, 88 + j, 80 + j))
    for p in range(4):
        A("v_cvt_pk_bf16_f32 v%d, v%d, v%d" % (108 + p, 100 + 2 * p, 101 + 2 * p))
    A("buffer_store_dwordx4 v[108:111], v7, s[60:63], s70 offen")
    stamp_flush()
    kernel_end(name)
    kernel_desc(name, max(FB + 16 * NB, 160))
    return (name, 224, 512, 8 * 64 * 272)

def gen_nop():
    name = "nop_kernel"
    kernel_begin(name, 1)
    kernel_end(name)
    kernel_desc(name, 8)
    return (name, 1, 64, 0)

def main():
    launches = []
    nn = int(os.environ.get("NOPS", "0"))
    if nn:
        l = gen_nop()
        launches += [l] * nn
    launches.append(gen_prep())
    launches.append(gen_lngemm("qkv"))
    launches.append(gen_attn())
    launches.append(gen_skgemm("wo"))
    launches.append(gen_lngemm("mlp1"))
    launches.append(gen_skgemm("mlp2"))
    hdr = open("cdna_kernels/%s.s.ref" % NAME).read().split("\n")
    out = []
    for l in hdr:
        if l.startswith("; @launch") or l.startswith("; Override"):
            continue
        if not l.startswith(";"):
            break
        out.append(l)
    only = sys.argv[2] if len(sys.argv) > 2 else None
    for (n, g, b, lds) in launches:
        out.append("; @launch kernel=%s grid=(%d,1,1) block=(%d,1,1) lds=%d" % (n, g, b, lds))
        if os.environ.get("DUP", "") and os.environ["DUP"] in n:
            out.append("; @launch kernel=%s grid=(%d,1,1) block=(%d,1,1) lds=%d" % (n, g, b, lds))
    out.append('.amdgcn_target "amdgcn-amd-amdhsa--gfx950"')
    out.append(".text")
    out += A.lines
    out.append('.section .rodata,"a"')
    for k in KDS:
        out.append(".p2align 6")
        out.append(k)
    open(sys.argv[1], "w").write("\n".join(out) + "\n")

if __name__ == "__main__":
    main()
```
